```python
import torch

def _softmax(x, axis=-1):
    return torch.softmax(x, dim=axis)
def _gelu(x):
    return torch.nn.functional.gelu(x, approximate="tanh")
def _silu(x):
    return torch.nn.functional.silu(x)
def _sigmoid(x):
    return torch.sigmoid(x)
def _layernorm(x, axis=-1, eps=1e-5):
    m = x.mean(dim=axis, keepdim=True)
    v = x.var(dim=axis, keepdim=True, unbiased=False)
    return (x - m) / torch.sqrt(v + eps)
def _scatter_add(tgt, idx, src, axis=0):
    return tgt.clone().index_add_(axis, idx, src)
def _segment_sum(src, seg, n):
    out = torch.zeros((n,) + src.shape[1:], dtype=src.dtype)
    return out.index_add_(0, seg, src)
def _pad(x, pw):
    flat = tuple(v for pair in reversed(pw) for v in pair)
    return torch.nn.functional.pad(x, flat)

kernel_name = 'standalone__gqa_softmax__near_ridge'

def setup_inputs():

    _w = (lambda a: (lambda t: t.to(torch.bfloat16) if t.is_floating_point() else t)(torch.as_tensor(a)))
    B, Hq, Hkv, Sq, Sk, D = 16, 32, 32, 384, 384, 192
    return {
        "q": _w((lambda *s: torch.randn(*s, dtype=torch.bfloat16) * 0.8)(B, Hq, Sq, D)),
        "k": _w((lambda *s: torch.randn(*s, dtype=torch.bfloat16) * 0.8)(B, Hkv, Sk, D)),
        "v": _w((lambda *s: torch.randn(*s, dtype=torch.bfloat16) * 0.05)(B, Hkv, Sk, D)),
    }

def reference(q, k, v):
    B, Hq, Sq, D = q.shape
    Hkv = k.shape[1]
    rep = Hq // Hkv
    k = (lambda x, n, axis: torch.repeat_interleave(x, n, dim=axis))(k, rep, axis=1)
    v = (lambda x, n, axis: torch.repeat_interleave(x, n, dim=axis))(v, rep, axis=1)
    scale = D ** -0.5
    scores = torch.einsum("bhqd,bhkd->bhqk", q, k) * scale
    p = _softmax(scores, axis=-1)
    return torch.einsum("bhqk,bhkd->bhqd", p, v)
```

```python
import sys, math, struct

NAME = "standalone__gqa_softmax__near_ridge_kernel"
HB = 147456
SLOT = 12288
STG = 147456
NHEADS_PER_WG = 2
NWG = 256

OPT = dict(delta=6, la=8.5, ldnt="nt", stnt="nt", stamp=0, codepf=1)
for a in sys.argv[1:]:
    if "=" in a:
        k, v = a.split("=")
        OPT[k] = type(OPT[k])(v) if k in OPT else v
DELTA = OPT["delta"]
LA = OPT["la"]
LDNT = OPT["ldnt"].replace("+", " ").replace("-", "")
STNT = OPT["stnt"].replace("+", " ").replace("-", "")


def f2u(x):
    return struct.unpack("<I", struct.pack("<f", x))[0]


CSCALE = (192 ** -0.5) * math.log2(math.e)

COST = dict(mfma=8, valu=4, trans=8, salu=4, dsr=4, dsw=8, dma=16, store=16, bar=4, label=0, branch=4, nop=4,
            wait=4, waitvm=4)


class Ins:
    _seq = 0

    def __init__(self, txt, kind, rd=(), wr=(), pos=None, ws=1, **meta):
        self.txt = txt
        self.kind = kind
        self.rd = [(r, None) if isinstance(r, str) else r for r in rd]
        self.wr = [(r, None) if isinstance(r, str) else r for r in wr]
        self.pos = pos
        self.ws = ws
        self.meta = meta
        self.seq = Ins._seq
        Ins._seq += 1

    @property
    def cost(self):
        return COST[self.kind] * self.ws if self.kind in ("salu", "nop") else COST[self.kind]


def R(f, n, cnt=1):
    return [f"{f}{n + i}" for i in range(cnt)]


def rs(f, n, cnt):
    return f"{f}{n}" if cnt == 1 else f"{f}[{n}:{n + cnt - 1}]"


def tagged(regs, tag):
    return [(r, f"{tag}.{i}") for i, r in enumerate(regs)]


S_W = 3
S_Q, S_K, S_V, S_O = 16, 20, 24, 28
S_C, S_NC, S_T = 32, 33, 34
S_W3072, S_W1024, S_WQO = 35, 36, 37
S_IT = 38
S_SOFF = 39
S_RET = 40
S_CMP = 42
S_TMP = 48
S_TMP2 = 49
S_PAR = 50
S_DBG = 52
S_ST = 56
V_FR = 0
V_KA = 16
V_VOK, V_VOV = 20, 21
V_NMC = 22
V_L = 25
V_TM = 28
V_LANE = 31
BIG = 32
SB0, SB1 = 160, 208
F0, F1 = 184, 232
V_VA0, V_VA1, V_STR = 16, 17, 18
V_ET = F0
V_PK = F0 + 4
V_RB = F0 + 12
V_STW = F0 + 20
V_PARK = F1
V_QA = [28, 29, 30, 22]


def Sreg(t, b):
    if t == 0:
        return BIG + 16 * b
    return (SB1 if t % 2 else SB0) + 16 * b


def Ploc(t, b):
    n = 3 * t + b
    if n < 14:
        return ("a", 144 + 8 * n)
    if t <= 9:
        return ("v", BIG + 8 * (n - 14))
    return ("v", (SB0 if t == 10 else SB1) + 8 * b)


def Qreg(b, ks):
    return 48 * (ks // 4) + 16 * b + 4 * (ks % 4)


def Oset(T, sg):
    return (2 * sg + T) % 3


def valu(txt, rd, wr, **m):
    return Ins(txt, "valu", rd, wr, **m)


def salu(txt, rd=(), wr=(), **m):
    return Ins(txt, "salu", rd, wr, **m)


def spread(lst, a, b):
    tot = sum(i.cost for i in lst)
    c = 0
    for i in lst:
        i.pos = a + (b - a) * (c / tot if tot else 0)
        c += i.cost
    return lst


def lane_const(kind, dst, t1, t2):
    L = f"v{V_LANE}"
    d, x, y = f"v{dst}", f"v{t1}", f"v{t2}"
    o = []

    def e(txt, rd, wr, last=False):
        o.append(valu(txt, rd, [(wr, f"const:{kind}" if last else None)]))
    LR = (L, "lane")
    if kind == "baseK":
        e(f"v_bfe_u32 {x}, {L}, 1, 3", [LR], x)
        e(f"v_lshrrev_b32 {y}, 5, {L}", [LR], y)
        e(f"v_xor_b32 {x}, {x}, {y}", [x, y], x)
        e(f"v_lshlrev_b32 {d}, 4, {x}", [x], d)
        e(f"v_and_b32 {x}, 7, {L}", [LR], x)
        e(f"v_lshl_add_u32 {d}, {x}, 7, {d}", [x, d], d)
        e(f"v_bfe_u32 {x}, {L}, 3, 2", [LR], x)
        e(f"v_mul_u32_u24 {x}, 3072, {x}", [x], x)
        e(f"v_add_u32 {d}, {d}, {x}", [d, x], d, True)
    elif kind == "baseQ":
        e(f"v_bfe_u32 {x}, {L}, 1, 2", [LR], x)
        e(f"v_or_b32 {x}, s{S_PAR}, {x}", [x], x)
        e(f"v_lshrrev_b32 {y}, 5, {L}", [LR], y)
        e(f"v_xor_b32 {x}, {x}, {y}", [x, y], x)
        e(f"v_lshlrev_b32 {d}, 4, {x}", [x], d)
        e(f"v_and_b32 {x}, 7, {L}", [LR], x)
        e(f"v_lshl_add_u32 {d}, {x}, 7, {d}", [x, d], d)
        e(f"v_bfe_u32 {x}, {L}, 3, 2", [LR], x)
        e(f"v_lshl_add_u32 {d}, {x}, 12, {d}", [x, d], d)
        e(f"v_add_u32 {d}, s{S_W1024}, {d}", [d], d, True)
    elif kind == "voffK":
        e(f"v_lshrrev_b32 {x}, 4, {L}", [LR], x)
        e(f"v_or_b32 {x}, s{S_PAR}, {x}", [x], x)
        e(f"v_and_b32 {y}, 7, {L}", [LR], y)
        e(f"v_xor_b32 {x}, {x}, {y}", [x, y], x)
        e(f"v_lshlrev_b32 {d}, 4, {x}", [x], d)
        e(f"v_lshrrev_b32 {x}, 3, {L}", [LR], x)
        e(f"v_mul_u32_u24 {x}, 384, {x}", [x], x)
        e(f"v_add3_u32 {d}, {d}, {x}, s{S_W3072}", [d, x], d, True)
    elif kind == "voffV":
        e(f"v_bfe_u32 {x}, {L}, 2, 3", [LR], x)
        e(f"v_mul_u32_u24 {d}, 384, {x}", [x], d)
        e(f"v_lshrrev_b32 {x}, 5, {L}", [LR], x)
        e(f"v_lshl_add_u32 {d}, {x}, 6, {d}", [x, d], d)
        e(f"v_and_b32 {x}, 3, {L}", [LR], x)
        e(f"v_lshl_add_u32 {d}, {x}, 4, {d}", [x, d], d)
        e(f"v_mov_b32 {x}, s{S_W3072}", [], x)
        e(f"v_mad_u32_u24 {d}, {x}, 3, {d}", [x, d], d, True)
    elif kind == "baseV":
        e(f"v_lshrrev_b32 {x}, 5, {L}", [LR], x)
        e(f"v_lshlrev_b32 {d}, 8, {x}", [x], d)
        e(f"v_bfe_u32 {x}, {L}, 2, 2", [LR], x)
        e(f"v_lshl_add_u32 {d}, {x}, 6, {d}", [x, d], d)
        e(f"v_and_b32 {x}, 1, {L}", [LR], x)
        e(f"v_lshl_add_u32 {d}, {x}, 5, {d}", [x, d], d)
        e(f"v_and_b32 {x}, 16, {L}", [LR], x)
        e(f"v_add_u32 {d}, {d}, {x}", [x, d], d)
        e(f"v_bfe_u32 {x}, {L}, 1, 1", [LR], x)
        e(f"v_lshl_add_u32 {d}, {x}, 3, {d}", [x, d], d, True)
    elif kind == "stW":
        e(f"v_lshrrev_b32 {x}, 5, {L}", [LR], x)
        e(f"v_lshlrev_b32 {x}, 1, {x}", [x], x)
        e(f"v_and_b32 {y}, 7, {L}", [LR], y)
        e(f"v_xor_b32 {x}, {x}, {y}", [x, y], x)
        e(f"v_lshlrev_b32 {d}, 4, {x}", [x], d)
        e(f"v_and_b32 {x}, 31, {L}", [LR], x)
        e(f"v_lshl_add_u32 {d}, {x}, 7, {d}", [x, d], d)
        e(f"v_mov_b32 {x}, s{S_W1024}", [], x)
        e(f"v_lshl_add_u32 {d}, {x}, 2, {d}", [x, d], d)
        e(f"v_add_u32 {d}, {STG}, {d}", [d], d, True)
    elif kind == "stR":
        e(f"v_lshrrev_b32 {x}, 4, {L}", [LR], x)
        e(f"v_or_b32 {x}, s{S_PAR}, {x}", [x], x)
        e(f"v_and_b32 {y}, 7, {L}", [LR], y)
        e(f"v_xor_b32 {x}, {x}, {y}", [x, y], x)
        e(f"v_lshrrev_b32 {y}, 3, {L}", [LR], y)
        e(f"v_xor_b32 {x}, {x}, {y}", [x, y], x)
        e(f"v_lshlrev_b32 {d}, 4, {x}", [x], d)
        e(f"v_lshl_add_u32 {d}, {y}, 7, {d}", [y, d], d)
        e(f"v_mov_b32 {x}, s{S_W1024}", [], x)
        e(f"v_lshl_add_u32 {d}, {x}, 2, {d}", [x, d], d)
        e(f"v_add_u32 {d}, {STG}, {d}", [d], d, True)
    else:
        raise ValueError(kind)
    return o


def dma(data, slot, m0base, m0const, voff, vtag, srd, soff_txt, inst_off):
    off = f" offset:{inst_off}" if inst_off else ""
    txt = (f"s_add_u32 m0, s{m0base}, {m0const - inst_off}\n"
           f"{soff_txt}\n"
           f"buffer_load_dwordx4 v{voff}, s[{srd}:{srd + 3}], s{S_SOFF} offen{off} {LDNT} lds")
    return Ins(txt, "dma", rd=[(f"v{voff}", vtag)], wr=["m0", "scc", f"s{S_SOFF}"], ws=3, data=data, slot=slot)


def dma_K(t):
    return [dma(("K", t), t, S_W3072, t * SLOT + g * 1024, V_VOK, "const:voffK", S_K,
                f"s_mov_b32 s{S_SOFF}, {t * SLOT}", g * 128) for g in range(3)]


def dma_V(j):
    sg, i = j // 4, j % 4
    return [dma(("V", j), j, S_W3072, j * SLOT + n * 1024, V_VOV, "const:voffV", S_V,
                f"s_mov_b32 s{S_SOFF}, {(96 * i + 8 * n) * 384 + sg * 128}", 0) for n in range(3)]


def dma_Q(slot):
    g = slot // 4
    o = []
    for k in range(3):
        n = (slot % 4) * 3 + k
        o.append(dma(("Q", g), slot, S_W1024, g * 49152 + n * 4096, V_VOK, "const:voffK", S_Q,
                     f"s_add_u32 s{S_SOFF}, s{S_WQO}, {n * 8 * 384 + g * 128}", 0))
    return o


def barrier(need, name=""):
    return Ins("s_barrier", "bar", need=need, name=name)


def waitvm(need):
    return Ins("", "waitvm", need=need)


STAMPN = [0]


def stamp():
    if not OPT["stamp"]:
        return []
    n = STAMPN[0]
    STAMPN[0] += 1
    return [Ins(f"s_memtime s[{60 + 2 * n}:{61 + 2 * n}]", "salu", smem=True)]


def q_step(g):
    o = lane_const("baseQ", V_QA[0], V_QA[1], V_QA[2])
    if g:
        o.append(valu(f"v_add_u32 v{V_QA[0]}, {g * 49152}, v{V_QA[0]}", [(f"v{V_QA[0]}", "const:baseQ")],
                      [(f"v{V_QA[0]}", "const:baseQ")]))
    for k in range(1, 4):
        o.append(valu(f"v_xor_b32 v{V_QA[k]}, {32 * k}, v{V_QA[0]}", [(f"v{V_QA[0]}", "const:baseQ")],
                      [(f"v{V_QA[k]}", f"qa{k}")]))
    o.append(waitvm([("Q", g)]))
    for k in range(4):
        for b in range(3):
            a = Qreg(b, 4 * g + k)
            o.append(Ins(f"ds_read_b128 a[{a}:{a + 3}], v{V_QA[k]} offset:{b * 16384}", "dsr",
                         rd=[(f"v{V_QA[k]}", f"qa{k}" if k else "const:baseQ")],
                         wr=tagged(R("a", a, 4), f"Q({b},{4 * g + k})"),
                         data=("Q", g), slots=[4 * g + s for s in range(4)], private=True))
    return o


def k_addr_setup(t1, t2):
    o = lane_const("baseK", V_KA, t1, t2)
    for k in range(1, 4):
        o.append(valu(f"v_xor_b32 v{V_KA + k}, {32 * k}, v{V_KA}", [(f"v{V_KA}", "const:baseK")],
                      [(f"v{V_KA + k}", "const:baseK")]))
    return o


def softmax(t):
    A, Bp = [], []
    for b in range(3):
        s = Sreg(t, b)
        tm, nmc, l = f"v{V_TM + b}", f"v{V_NMC + b}", f"v{V_L + b}"
        St = lambda r: (f"v{s + r}", f"S({t},{b})@11.{r}")
        Xt = lambda r: (f"v{s + r}", f"X({t},{b}).{r}")
        Et = lambda r: (f"v{s + r}", f"E({t},{b}).{r}")

        def fma(r):
            return valu(f"v_fma_f32 v{s + r}, v{s + r}, s{S_C}, {nmc}", [St(r), (nmc, f"nmc{b}")], [Xt(r)])

        def maxchain(src):
            o = [valu(f"v_max3_f32 {tm}, v{s}, v{s + 1}, v{s + 2}", [src(0), src(1), src(2)], [(tm, f"tm{b}")])]
            for r in range(3, 15, 2):
                o.append(valu(f"v_max3_f32 {tm}, {tm}, v{s + r}, v{s + r + 1}",
                              [(tm, f"tm{b}"), src(r), src(r + 1)], [(tm, f"tm{b}")]))
            o.append(valu(f"v_max_f32 {tm}, {tm}, v{s + 15}", [(tm, f"tm{b}"), src(15)], [(tm, f"tm{b}")]))
            return o
        if t == 0:
            A += maxchain(St)
            A.append(valu(f"v_mov_b32 {nmc}, {tm}", [(tm, f"tm{b}")], [(nmc, "tmp")]))
        else:
            mc = maxchain(Xt)
            f = [fma(r) for r in range(16)]
            A += f[0:4] + [mc[0]]
            k = 4
            for i in range(1, 8):
                A += f[k:k + 2]
                k += 2
                A.append(mc[i])
            A.append(valu(f"v_cmp_lt_f32 s[{S_CMP + 2 * b}:{S_CMP + 2 * b + 1}], s{S_T}, {tm}", [(tm, f"tm{b}")],
                          [f"s{S_CMP + 2 * b}", f"s{S_CMP + 2 * b + 1}"]))
        pf, pr = Ploc(t, b)
        ex = [Ins(f"v_exp_f32 v{s + r}, v{s + r}", "trans", [Xt(r)], [Et(r)]) for r in range(16)]

        def tail(k):
            o = []
            r0, r1 = 2 * k, 2 * k + 1
            if t == 0 and k == 0:
                o.append(valu(f"v_add_f32 {l}, v{s + r0}, v{s + r1}", [Et(r0), Et(r1)], [(l, f"l{b}")]))
            else:
                o.append(valu(f"v_add_f32 {l}, {l}, v{s + r0}", [(l, f"l{b}"), Et(r0)], [(l, f"l{b}")]))
                o.append(valu(f"v_add_f32 {l}, {l}, v{s + r1}", [(l, f"l{b}"), Et(r1)], [(l, f"l{b}")]))
            if pf == "v":
                o.append(valu(f"v_cvt_pk_bf16_f32 v{pr + k}, v{s + r0}, v{s + r1}", [Et(r0), Et(r1)],
                              [(f"v{pr + k}", f"P({t},{b}).{k}")]))
            else:
                o.append(valu(f"v_cvt_pk_bf16_f32 v{s + r0}, v{s + r0}, v{s + r1}", [Et(r0), Et(r1)],
                              [(f"v{s + r0}", "ptmp")]))
                o.append(valu(f"v_accvgpr_write_b32 a{pr + k}, v{s + r0}", [(f"v{s + r0}", "ptmp")],
                              [(f"a{pr + k}", f"P({t},{b}).{k}")]))
            return o
        blk = []
        if t == 0:
            blk.append(valu(f"v_permlane32_swap_b32 {tm}, {nmc}", [(tm, f"tm{b}"), (nmc, "tmp")],
                            [(tm, "tmA"), (nmc, "tmB")], permlane=True))
            blk.append(valu(f"v_max_f32 {tm}, {tm}, {nmc}", [(tm, "tmA"), (nmc, "tmB")], [(tm, "tmC")]))
            blk.append(valu(f"v_mul_f32 {nmc}, s{S_NC}, {tm}", [(tm, "tmC")], [(nmc, f"nmc{b}")]))
            f = [fma(r) for r in range(16)]
            blk += f[0:4]
            for k in range(8):
                blk += [ex[2 * k]]
                blk += f[4 + 2 * k:6 + 2 * k]
                blk += [ex[2 * k + 1]]
                if k:
                    blk += tail(k - 1)
            blk += tail(7)
        else:
            for k in range(8):
                tl = tail(k - 1) if k else []
                blk += [ex[2 * k]] + tl[:2] + [ex[2 * k + 1]] + tl[2:]
            blk += tail(7)
        Bp += blk
    if t:
        A.append(Ins(f"s_or_b64 s[{S_CMP}:{S_CMP + 1}], s[{S_CMP}:{S_CMP + 1}], s[{S_CMP + 2}:{S_CMP + 3}]\n"
                     f"s_or_b64 s[{S_CMP}:{S_CMP + 1}], s[{S_CMP}:{S_CMP + 1}], s[{S_CMP + 4}:{S_CMP + 5}]\n"
                     f"s_cbranch_scc1 L_rare{t}\nL_ret{t}:", "salu", wr=["scc"], ws=3, check=t))
    return A + Bp


def l_final():
    o = []
    for b in range(3):
        l, x = f"v{V_L + b}", f"v{V_NMC + b}"
        o.append(valu(f"v_mov_b32 {x}, {l}", [(l, f"l{b}")], [(x, "tmp")]))
    for b in range(3):
        l, x = f"v{V_L + b}", f"v{V_NMC + b}"
        o.append(valu(f"v_permlane32_swap_b32 {l}, {x}", [(l, f"l{b}"), (x, "tmp")], [(l, "lA"), (x, "lB")],
                      permlane=True))
    for b in range(3):
        l, x = f"v{V_L + b}", f"v{V_NMC + b}"
        o.append(valu(f"v_add_f32 {l}, {l}, {x}", [(l, "lA"), (x, "lB")], [(l, "lC")]))
    for b in range(3):
        l = f"v{V_L + b}"
        o.append(Ins(f"v_rcp_f32 {l}, {l}", "trans", [(l, "lC")], [(l, f"inv{b}")]))
    return o


def evac(T, sg):
    X = Oset(T, sg)
    o = []
    for b in range(3):
        a = 48 * X + 16 * b
        inv = (f"v{V_L + b}", f"inv{b}")
        dst = V_PARK + 8 * b if T == 0 else V_PK
        dtag = f"OP({sg},{T},{b})"

        def rd(k):
            t0 = V_ET + 2 * (k % 2)
            return [valu(f"v_accvgpr_read_b32 v{t0 + e}, a{a + 2 * k + e}",
                         [(f"a{a + 2 * k + e}", f"O({sg},{T},{b})@23.{2 * k + e}")], [(f"v{t0 + e}", f"et{k}.{e}")])
                    for e in range(2)]

        def fin(k):
            t0 = V_ET + 2 * (k % 2)
            r = [valu(f"v_mul_f32 v{t0 + e}, v{t0 + e}, {inv[0]}", [(f"v{t0 + e}", f"et{k}.{e}"), inv],
                      [(f"v{t0 + e}", f"em{k}.{e}")]) for e in range(2)]
            r.append(valu(f"v_cvt_pk_bf16_f32 v{dst + k}, v{t0}, v{t0 + 1}",
                          [(f"v{t0}", f"em{k}.0"), (f"v{t0 + 1}", f"em{k}.1")], [(f"v{dst + k}", f"{dtag}.{k}")]))
            return r
        o += rd(0)
        for k in range(8):
            if k < 7:
                o += rd(k + 1)
            o += fin(k)
        if T == 1:
            for TT in range(2):
                for e in range(2):
                    src = (V_PARK + 8 * b if TT == 0 else V_PK) + 4 * e
                    tg = f"OP({sg},{TT},{b})"
                    aw = V_STW + 2 * TT + e
                    o.append(Ins(f"ds_write_b128 v{aw}, v[{src}:{src + 3}]", "dsw",
                                 rd=[(f"v{aw}", f"stw{2 * TT + e}")] + [(f"v{src + i}", f"{tg}.{4 * e + i}") for i in range(4)]))
            rds, sts = [], []
            for i in range(4):
                rb = V_RB + 4 * (i % 2)
                rds.append(Ins(f"ds_read_b128 v[{rb}:{rb + 3}], v{V_STR} offset:{i * 1024}", "dsr",
                               rd=[(f"v{V_STR}", "const:stR")], wr=tagged(R("v", rb, 4), f"rb{i}")))
                sts.append(Ins(f"s_add_u32 s{S_SOFF}, s{S_WQO}, {(32 * b + 8 * i) * 384 + sg * 128}\n"
                               f"buffer_store_dwordx4 v[{rb}:{rb + 3}], v{V_VOK}, s[{S_O}:{S_O + 3}], s{S_SOFF} offen {STNT}",
                               "store", rd=[(f"v{V_VOK}", "const:voffK")] + tagged(R("v", rb, 4), f"rb{i}"),
                               wr=["scc", f"s{S_SOFF}"], ws=2, data=("O", sg)))
            o.append(("deferred", [rds[0], rds[1], sts[0], rds[2], sts[1], rds[3], sts[2], sts[3]]))
    out = []
    pend = []
    cnt = 0
    for x in o:
        if isinstance(x, tuple):
            out += pend
            pend = list(x[1])
            out += pend[:2]
            pend = pend[2:]
            cnt = 0
            continue
        if x.kind == "dsw" and pend:
            out += pend
            pend = []
        out.append(x)
        cnt += 1
        if pend and cnt % 6 == 0:
            out.append(pend.pop(0))
    out += pend
    return out


def phase2_consts():
    o = lane_const("stW", V_STW, V_ET, V_ET + 1)
    o[-1].wr = [(f"v{V_STW}", "stw0")]
    for k in range(1, 4):
        x = (16 if k & 1 else 0) + (64 if k & 2 else 0)
        o.append(valu(f"v_xor_b32 v{V_STW + k}, {x}, v{V_STW}", [(f"v{V_STW}", "stw0")], [(f"v{V_STW + k}", f"stw{k}")]))
    o += lane_const("stR", V_STR, V_ET, V_ET + 1)
    return o


def build_body():
    ins = []
    frags = []
    spine = 0
    for t in range(12):
        for ks in range(12):
            n = len(frags)
            frags.append(("K", t, ks))
            fb = V_FR + 4 * (n % 4)
            for b in range(3):
                s = Sreg(t, b)
                q = Qreg(b, ks)
                c = "0" if ks == 0 else f"v[{s}:{s + 15}]"
                rd = tagged(R("v", fb, 4), f"K({t},{ks})") + tagged(R("a", q, 4), f"Q({b},{ks})")
                if ks:
                    rd += tagged(R("v", s, 16), f"S({t},{b})@{ks - 1}")
                ins.append(Ins(f"v_mfma_f32_32x32x16_bf16 v[{s}:{s + 15}], v[{fb}:{fb + 3}], a[{q}:{q + 3}], {c}",
                               "mfma", rd, tagged(R("v", s, 16), f"S({t},{b})@{ks}"), pos=spine,
                               cregs=set(R("v", s, 16)) if ks else set()))
                spine += 1
    rpos = {}
    for rho in range(72 + DELTA):
        rpos[rho] = spine
        for T in range(2):
            n1 = rho - (DELTA if T else 0)
            if not (0 <= n1 < 72):
                continue
            sg, s = n1 // 24, n1 % 24
            n = len(frags)
            frags.append(("V", T, sg, s))
            fb = V_FR + 4 * (n % 4)
            X = Oset(T, sg)
            for b in range(3):
                a = 48 * X + 16 * b
                pf, pr = Ploc(s // 2, b)
                pr += 4 * (s % 2)
                c = "0" if s == 0 else f"a[{a}:{a + 15}]"
                rd = tagged(R("v", fb, 4), f"V({T},{sg},{s})") + \
                    [(f"{pf}{pr + i}", f"P({s // 2},{b}).{4 * (s % 2) + i}") for i in range(4)]
                if s:
                    rd += tagged(R("a", a, 16), f"O({sg},{T},{b})@{s - 1}")
                ins.append(Ins(f"v_mfma_f32_32x32x16_bf16 a[{a}:{a + 15}], v[{fb}:{fb + 3}], {pf}[{pr}:{pr + 3}], {c}",
                               "mfma", rd, tagged(R("a", a, 16), f"O({sg},{T},{b})@{s}"), pos=spine,
                               cregs=set(R("a", a, 16)) if s else set()))
                spine += 1
    rpos[72 + DELTA] = spine
    END = spine
    first_read, last_read = {}, {}
    pre = []
    vwin = [0, 0]
    for n, fr in enumerate(frags):
        fb = V_FR + 4 * (n % 4)
        p = 3 * n - LA
        if fr[0] == "K":
            _, t, ks = fr
            g, k4 = ks // 4, ks % 4
            if t == 6 and ks < 4:
                ins.append(valu(f"v_add_u32 v{V_KA + k4}, {6 * SLOT}, v{V_KA + k4}",
                                [(f"v{V_KA + k4}", "const:baseK")], [(f"v{V_KA + k4}", "baseK1")], pos=p - 0.1))
            off = (t % 6) * SLOT + g * 1024
            lst = [Ins(f"ds_read_b128 v[{fb}:{fb + 3}], v{V_KA + k4} offset:{off}", "dsr",
                       rd=[(f"v{V_KA + k4}", "const:baseK" if t < 6 else "baseK1")],
                       wr=tagged(R("v", fb, 4), f"K({t},{ks})"), pos=p, data=("K", t), slots=[t])]
            d = ("K", t)
        else:
            _, T, sg, s = fr
            j = 4 * sg + s // 6
            va = V_VA1 if T else V_VA0
            w = j // 5
            if w != vwin[T]:
                ins.append(valu(f"v_add_u32 v{va}, {5 * SLOT}, v{va}", [(f"v{va}", f"va{T}.{vwin[T]}")],
                                [(f"v{va}", f"va{T}.{w}")], pos=p - 0.1))
                vwin[T] = w
            lst = []
            tg = tagged(R("v", fb, 4), f"V({T},{sg},{s})")
            for jj in range(2):
                off = (j % 5) * SLOT + (2 * (s % 6) + jj) * 1024 + T * 512
                lst.append(Ins(f"ds_read_b64_tr_b16 v[{fb + 2 * jj}:{fb + 2 * jj + 1}], v{va} offset:{off}", "dsr",
                               rd=[(f"v{va}", f"va{T}.{w}")], wr=tg[2 * jj:2 * jj + 2], pos=p + 0.01 * jj + (1.0 if jj else 0),
                               data=("V", j), slots=[j]))
            d = ("V", j)
        for x in lst:
            first_read.setdefault(d, x.pos)
            last_read[d] = x.pos
            (pre if x.pos < 0 else ins).append(x)
    kl = last_read[("K", 11)]
    vs = lane_const("baseV", V_VA0, V_KA + 2, V_KA + 3)
    vs[-1].wr = [(f"v{V_VA0}", "va0.0")]
    vs.append(valu(f"v_mov_b32 v{V_VA1}, v{V_VA0}", [(f"v{V_VA0}", "va0.0")], [(f"v{V_VA1}", "va1.0")]))
    spread(vs, kl + 0.05, first_read[("V", 0)] - 0.3)
    ins += vs
    for t in range(12):
        sm = softmax(t)
        a = 36 * (t + 1) + 3.2
        b = 36 * (t + 2) - 0.5 if t < 11 else 36 * 12 + 40
        spread(sm, a, b)
        ins += sm
        if t == 11:
            chk = [x for x in sm if x.meta.get("check")][0]
            assert chk.pos < rpos[DELTA], "check(11) must precede T1 start"
    lf = l_final()
    spread(lf, 432 + 41, 432 + 46)
    ins += lf
    p2c = phase2_consts()
    spread(p2c, 432 + 47, 432 + 56)
    ins += p2c
    tail = []
    for sg in range(3):
        e0 = evac(0, sg)
        a = rpos[24 * sg + 24] - (3 if 24 * sg + 23 >= DELTA else 0) + 3.2
        spread(e0, a, rpos[24 * sg + 24 + DELTA] + (2.5 if sg < 2 else -0.5))
        ins += e0
        e1 = evac(1, sg)
        if sg < 2:
            spread(e1, rpos[24 * sg + 24 + DELTA] + 3.2, rpos[24 * sg + 24 + DELTA + 8])
            ins += e1
        else:
            tail = e1
    qs = q_step(0)
    bq = first_read[("V", 11)] - 0.2
    spread(qs, rpos[48 + DELTA + 8] + 0.5, bq - 2.5)
    ins += qs
    bars = []
    for t in range(1, 12):
        bb = barrier([("K", t)], f"K{t}")
        bb.pos = first_read[("K", t)] - 0.2
        bars.append(bb)
    for j in range(12):
        bb = barrier([("V", j)], f"V{j}")
        bb.pos = first_read[("V", j)] - 0.2
        bars.append(bb)
    for j in (10, 11):
        bb = barrier([], f"rel{j}")
        bb.pos = last_read[("V", j)] + 3.0
        bars.append(bb)
    ins += bars
    bpos = sorted(x.pos for x in bars)

    def after(p):
        for x in bpos:
            if x > p:
                return x
        raise ValueError(p)
    for t in range(12):
        p = after(last_read[("K", t)])
        for k, x in enumerate(dma_V(t)):
            x.pos = p + 1.4 + 2 * k
            ins.append(x)
    for j in range(12):
        p = after(last_read[("V", j)])
        for k, x in enumerate(dma_Q(j)):
            x.pos = p + 1.4 + 2 * k + (0 if j != 0 else 0)
            ins.append(x)
    k = 0
    for t in range(4):
        for x in dma_K(t):
            x.pos = bq + 8.4 + 2 * k
            k += 1
            ins.append(x)
    ins.sort(key=lambda x: (x.pos, x.seq))
    return pre, ins, tail


def build():
    pro = []
    P = pro.append
    P(salu(f"s_cmp_ge_u32 s2, {NWG}\ns_cbranch_scc1 L_end", ws=2))
    P(Ins("s_load_dwordx8 s[4:11], s[0:1], 0", "salu", smem=True))
    if OPT["stamp"]:
        P(Ins("s_load_dwordx2 s[12:13], s[0:1], 40", "salu", smem=True))
    P(valu("v_lshrrev_b32 v1, 6, v0", [], ["v1"]))
    P(valu(f"v_and_b32 v{V_LANE}, 63, v0", [], [(f"v{V_LANE}", "lane")]))
    P(valu(f"v_readfirstlane_b32 s{S_W}, v1", ["v1"], [f"s{S_W}"]))
    P(salu(f"s_mov_b32 s{S_C}, {f2u(CSCALE):#x}\ns_mov_b32 s{S_NC}, {f2u(-CSCALE):#x}\ns_mov_b32 s{S_T}, {f2u(8.0):#x}", ws=3))
    P(salu(f"s_mul_i32 s{S_W3072}, s{S_W}, 3072\ns_lshl_b32 s{S_W1024}, s{S_W}, 10\ns_mul_i32 s{S_WQO}, s{S_W}, {88 * 384}\n"
           f"s_and_b32 s{S_PAR}, s{S_W}, 1\ns_lshl_b32 s{S_PAR}, s{S_PAR}, 2\ns_mov_b32 s{S_IT}, 0\n"
           f"s_mul_i32 s{S_TMP}, s2, {HB}", ws=7))
    pro += lane_const("voffK", V_VOK, 1, 2)
    pro += lane_const("voffV", V_VOV, 1, 2)
    P(Ins("s_waitcnt lgkmcnt(0)", "wait"))
    for i, base in enumerate([S_Q, S_K, S_V, S_O]):
        P(salu(f"s_add_u32 s{base}, s{4 + 2 * i}, s{S_TMP}\ns_addc_u32 s{base + 1}, s{5 + 2 * i}, 0\n"
               f"s_mov_b32 s{base + 2}, {HB}\ns_mov_b32 s{base + 3}, 0x20000", ws=4))
    for slot in range(12):
        pro += dma_Q(slot)
    pro += q_step(0)
    P(barrier([], "q0"))
    for t in range(4):
        pro += dma_K(t)
    pre, body, tail = build_body()
    q1 = [Ins("L_q1:", "label", ws=0)]
    q1 += q_step(1)
    q1.append(barrier([], "q1"))
    for t in range(4, 8):
        q1 += dma_K(t)
    q1 += q_step(2)
    q1 += k_addr_setup(V_TM, V_TM + 1)
    q1.append(barrier([("K", 0)], "q2"))
    for t in range(8, 12):
        q1 += dma_K(t)
    step = NWG * HB
    adv = lambda s: f"s_add_u32 s{s}, s{s}, {step}\ns_addc_u32 s{s + 1}, s{s + 1}, 0"
    q1.append(salu(f"s_cmp_lt_u32 s{S_IT}, {NHEADS_PER_WG - 1}\ns_cselect_b32 s{S_TMP}, {HB}, 0\n"
                   f"s_cselect_b32 s{S_TMP2}, {step}, 0\n"
                   f"s_add_u32 s{S_Q}, s{S_Q}, s{S_TMP2}\ns_addc_u32 s{S_Q + 1}, s{S_Q + 1}, 0\n"
                   f"s_add_u32 s{S_K}, s{S_K}, s{S_TMP2}\ns_addc_u32 s{S_K + 1}, s{S_K + 1}, 0\n"
                   f"s_mov_b32 s{S_Q + 2}, s{S_TMP}\ns_mov_b32 s{S_K + 2}, s{S_TMP}", ws=9))
    q1 += pre
    end = list(tail)
    end.append(Ins("s_waitcnt lgkmcnt(0)", "wait", lgkm0=True))
    end.append(salu(f"s_add_u32 s{S_IT}, s{S_IT}, 1\ns_cmp_ge_u32 s{S_IT}, {NHEADS_PER_WG}\ns_cbranch_scc1 L_end\n"
                    f"{adv(S_V)}\n{adv(S_O)}\ns_branch L_q1", ws=8))
    return pro, q1 + body + end


def insert_lgkm(seq, released_at=None):
    out = []
    pend = []
    nxt = {}
    cur = None
    for x in seq:
        if x.kind == "bar":
            cur = x
            nxt[id(x)] = set()
        elif x.kind == "dma" and cur is not None:
            nxt[id(cur)].add(x.meta["slot"])
    for x in seq:
        need = None
        regs = set(r for r, _ in x.rd) | set(r for r, _ in x.wr)
        for k, p in enumerate(pend):
            if p.kind == "dsr" and regs & set(r for r, _ in p.wr):
                need = k
        if x.kind == "bar":
            for k, p in enumerate(pend):
                if p.kind == "dsr" and set(p.meta.get("slots", [])) & nxt[id(x)]:
                    need = k if need is None else max(need, k)
            x.meta["lgkm"] = None
            if need is not None:
                x.meta["lgkm"] = min(15, len(pend) - 1 - need)
                pend = pend[len(pend) - x.meta["lgkm"]:] if x.meta["lgkm"] else []
        elif need is not None:
            n = min(15, len(pend) - 1 - need)
            out.append(Ins(f"s_waitcnt lgkmcnt({n})", "wait", lgkm=n))
            pend = pend[len(pend) - n:] if n else []
        if x.kind == "wait" and ("lgkmcnt(0)" in x.txt):
            pend = []
        out.append(x)
        if x.kind in ("dsr", "dsw"):
            pend.append(x)
    return out


def resolve_vm(dyn):
    vm = []
    for x in dyn:
        if x.kind in ("dma", "store"):
            vm.append(x.meta["data"])
        elif x.kind in ("bar", "waitvm"):
            n = None
            for d in x.meta["need"]:
                idx = max(i for i, y in enumerate(vm) if y == d)
                k = len(vm) - 1 - idx
                n = k if n is None else min(n, k)
            x.meta.setdefault("vmlist", []).append(n)
    for x in dyn:
        if x.kind in ("bar", "waitvm"):
            l = x.meta["vmlist"]
            x.meta["vm"] = None if l[0] is None else min(63, min(l))


def finalize_waits(seq):
    for x in seq:
        if x.kind in ("bar", "waitvm"):
            w = []
            if x.meta.get("vm") is not None:
                w.append(f"vmcnt({x.meta['vm']})")
            if x.meta.get("lgkm") is not None:
                w.append(f"lgkmcnt({x.meta['lgkm']})")
            t = ("s_waitcnt " + " ".join(w)) if w else ""
            if x.kind == "bar":
                x.txt = (t + "\n" if t else "") + "s_barrier"
                x.ws = 2 if t else 1
            else:
                x.txt = t
            x.txt += f"   ; {x.meta.get('name', '')} need={x.meta['need']} vm={x.meta['vmlist']}"


def hazards(dyn):
    fix = {}
    isv = lambda x: x.kind in ("valu", "trans")
    for i, x in enumerate(dyn):
        if x.kind in ("label",):
            continue
        rd = set(r for r, _ in x.rd)
        wr = set(r for r, _ in x.wr)
        dist = 0
        j = i - 1
        need = 0
        while j >= 0 and dist < 14:
            y = dyn[j]
            ywr = set(r for r, _ in y.wr)
            yrd = set(r for r, _ in y.rd)
            req = 0
            if y.kind == "mfma":
                if x.kind == "mfma":
                    ab = rd - x.meta["cregs"]
                    if ab & ywr:
                        req = 12
                    elif x.meta["cregs"] & ywr and x.meta["cregs"] != ywr:
                        req = 10
                    elif (wr & ywr) and not (x.meta["cregs"] & ywr):
                        req = 10
                elif (rd | wr) & ywr:
                    req = 12
                elif isv(x) and wr & y.meta["cregs"]:
                    req = 7
            elif isv(y):
                if x.kind == "mfma" and rd & ywr:
                    req = 2
                if y.kind == "trans" and x.kind == "valu" and rd & ywr:
                    req = max(req, 1)
                if x.meta.get("permlane") and rd & ywr:
                    req = max(req, 2)
                if "readfirstlane" in x.txt and rd & ywr:
                    req = max(req, 1)
            elif y.kind == "store":
                if wr & yrd:
                    req = 2
            if req > dist:
                need = max(need, req - dist)
            dist += y.ws + fix.get(id(y), 0)
            j -= 1
        if need:
            fix[id(x)] = max(fix.get(id(x), 0), need)
    return fix


def check_tags(dyn):
    st = {}
    errs = 0
    for x in dyn:
        for r, tg in x.rd:
            if tg is not None and st.get(r) != tg:
                print(f"TAG ERROR: {x.txt.splitlines()[-1]} reads {r}: expected {tg} found {st.get(r)} (pos {x.pos})",
                      file=sys.stderr)
                errs += 1
                if errs > 20:
                    sys.exit(1)
        for r, tg in x.wr:
            st[r] = tg
    if errs:
        sys.exit(1)


def check_lds(dyn):
    cur = {}
    reads = {}
    released = {s: True for s in range(12)}
    nvm = 0
    nlds = 0
    done_vm = 0
    done_lds = 0
    for x in dyn:
        if x.kind in ("bar", "waitvm", "wait"):
            vm = x.meta.get("vm")
            if vm is not None:
                done_vm = max(done_vm, nvm - vm)
            lg = x.meta.get("lgkm")
            if x.kind == "wait" and "lgkmcnt(0)" in x.txt:
                lg = 0
            if lg is not None:
                done_lds = max(done_lds, nlds - lg)
            if x.kind == "bar":
                for s, c in cur.items():
                    if len(c["ops"]) == 3 and max(c["ops"]) < done_vm:
                        c["visible"] = True
                for s in range(12):
                    if all(i < done_lds for i in reads.get(s, [])):
                        released[s] = True
        elif x.kind == "dma":
            s = x.meta["slot"]
            c = cur.get(s)
            if c is None or len(c["ops"]) == 3:
                assert released[s], f"DMA into unreleased slot {s}: {x.meta} pos {x.pos}"
                if c is not None:
                    assert c["nread"] == c["exp"], f"slot {s} overwritten after {c['nread']} reads of {c['data']}"
                exp = {"K": 12, "V": 24, "Q": 12}[x.meta["data"][0]]
                cur[s] = c = dict(data=x.meta["data"], ops=[], visible=False, nread=0, exp=exp)
                reads[s] = []
            assert c["data"] == x.meta["data"]
            c["ops"].append(nvm)
            nvm += 1
        elif x.kind == "store":
            nvm += 1
        elif x.kind in ("dsr", "dsw"):
            for s in x.meta.get("slots", []):
                c = cur[s]
                assert c["data"] == x.meta["data"], f"read of {x.meta['data']} finds {c['data']} in slot {s}"
                assert len(c["ops"]) == 3 and max(c["ops"]) < done_vm, f"read before landing {x.meta} pos {x.pos}"
                if not x.meta.get("private"):
                    assert c["visible"], f"read before barrier {x.meta} pos {x.pos}"
                c["nread"] += 1
                reads[s].append(nlds)
                released[s] = False
            nlds += 1


def rare_code():
    L = []
    A = L.append
    sp = STG
    for t in range(1, 12):
        A(f"L_rare{t}:")
        A("s_waitcnt lgkmcnt(0)")
        A("s_nop 15")
        for b in range(3):
            tm, nmc, l = f"v{V_TM + b}", f"v{V_NMC + b}", f"v{V_L + b}"
            s = Sreg(t, b)
            pass
        A(f"s_call_b64 s[{S_RET}:{S_RET + 1}], L_rare_pre")
        for b in range(3):
            tm = f"v{V_TM + b}"
            s = Sreg(t, b)
            for r in range(16):
                A(f"v_sub_f32 v{s + r}, v{s + r}, {tm}")
        for b in range(3):
            tm, l = f"v{V_TM + b}", f"v{V_L + b}"
            A(f"v_sub_f32 {tm}, 0, {tm}")
            A(f"v_exp_f32 {tm}, {tm}")
            A("s_nop 0")
            A(f"v_mul_f32 {l}, {l}, {tm}")
        if t == 11:
            X = Oset(0, 0)
            for b in range(3):
                for r in range(16):
                    a = 48 * X + 16 * b + r
                    A(f"v_accvgpr_read_b32 v0, a{a}")
                    A(f"v_mul_f32 v0, v0, v{V_TM + b}")
                    A(f"v_accvgpr_write_b32 a{a}, v0")
        A(f"s_call_b64 s[{S_RET}:{S_RET + 1}], L_resc{t - 1}")
        A(f"s_branch L_ret{t}")
    A("L_rare_pre:")
    A(f"s_lshl_b32 s{S_TMP}, s{S_W1024}, 2")
    A(f"v_lshlrev_b32 v{V_LANE}, 4, v{V_LANE}")
    A(f"v_add_u32 v{V_LANE}, s{S_TMP}, v{V_LANE}")
    A(f"v_add_u32 v{V_LANE}, {sp}, v{V_LANE}")
    A(f"ds_write_b128 v{V_LANE}, v[0:3]")
    A("s_waitcnt lgkmcnt(0)")
    for b in range(3):
        tm, nmc = f"v{V_TM + b}", f"v{V_NMC + b}"
        A(f"v_mov_b32 v0, {tm}")
        A("s_nop 1")
        A(f"v_permlane32_swap_b32 {tm}, v0")
        A("s_nop 1")
        A(f"v_max3_f32 {tm}, {tm}, v0, 0")
        A(f"v_sub_f32 {nmc}, {nmc}, {tm}")
    A(f"s_setpc_b64 s[{S_RET}:{S_RET + 1}]")
    for t in range(10, -1, -1):
        A(f"L_resc{t}:")
        for b in range(3):
            pf, pr = Ploc(t, b)
            f = f"v{V_TM + b}"
            for k in range(8):
                if pf == "a":
                    A(f"v_accvgpr_read_b32 v1, a{pr + k}")
                    p = "v1"
                else:
                    p = f"v{pr + k}"
                A(f"v_lshlrev_b32 v0, 16, {p}")
                A(f"v_and_b32 {p}, 0xffff0000, {p}")
                A(f"v_mul_f32 v0, v0, {f}")
                A(f"v_mul_f32 {p}, {p}, {f}")
                A(f"v_cvt_pk_bf16_f32 {p}, v0, {p}")
                if pf == "a":
                    A(f"v_accvgpr_write_b32 a{pr + k}, v1")
    A(f"ds_read_b128 v[0:3], v{V_LANE}")
    A(f"v_mbcnt_lo_u32_b32 v{V_LANE}, -1, 0")
    A(f"v_mbcnt_hi_u32_b32 v{V_LANE}, -1, v{V_LANE}")
    A("s_waitcnt lgkmcnt(0)")
    A("s_nop 1")
    A(f"s_setpc_b64 s[{S_RET}:{S_RET + 1}]")
    return L


def main():
    pro, loop = build()
    pro = insert_lgkm(pro + [Ins("s_waitcnt lgkmcnt(0)", "wait")])
    loop = insert_lgkm(loop)
    dyn = pro + loop + loop
    resolve_vm(dyn)
    finalize_waits(pro + loop)
    check_tags(dyn)
    check_lds(dyn)
    fix = hazards(dyn)
    out = []
    hdr = open("standalone__gqa_softmax__near_ridge.s.ref").read().split("; Override")[0]
    out.append(hdr.rstrip())
    out.append(f"; @launch grid=({NWG},1,1) block=(256,1,1) lds=163840")
    out.append('.amdgcn_target "amdgcn-amd-amdhsa--gfx950"')
    out.append(f".text\n.globl {NAME}\n.p2align 8\n.type {NAME},@function\n{NAME}:")
    nn = 0
    for x in pro + loop:
        k = fix.get(id(x), 0)
        if k:
            out.append(f"s_nop {k - 1}")
            nn += 1
        if x.txt.strip():
            out.append(x.txt)
    out.append("L_end:\ns_endpgm")
    out += rare_code()
    out.append(f'''.section .rodata,"a"
.p2align 6
.amdhsa_kernel {NAME}
  .amdhsa_next_free_vgpr 512
  .amdhsa_next_free_sgpr 102
  .amdhsa_accum_offset 256
  .amdhsa_group_segment_fixed_size 0
  .amdhsa_kernarg_size 48
  .amdhsa_user_sgpr_count 2
  .amdhsa_user_sgpr_kernarg_segment_ptr 1
  .amdhsa_system_sgpr_workgroup_id_x 1
.end_amdhsa_kernel''')
    print("\n".join(out))
    print(f"nops inserted: {nn}; loop instrs {len(loop)}", file=sys.stderr)


main()
```

```python
import sys, math, struct

NAME = "standalone__gqa_softmax__near_ridge_kernel"
HB = 147456
SLOT = 12288
STG = 147456
NHEADS_PER_WG = 2
NWG = 256

OPT = dict(delta=11, la=8.5, pace1=5.0, nk0=2, dst0=20.0, dstpace=16.0, pace3=6.0, smstart=1.2, nomax=0, pace2=9.0, ldnt="nt", stnt="nt", stamp=0, codepf=1)
for a in sys.argv[1:]:
    if "=" in a:
        k, v = a.split("=")
        OPT[k] = type(OPT[k])(v) if k in OPT else v
DELTA = OPT["delta"]
LA = OPT["la"]
NK0 = OPT["nk0"]
SMSTART = OPT["smstart"]
LDNT = OPT["ldnt"].replace("+", " ").replace("-", "")
STNT = OPT["stnt"].replace("+", " ").replace("-", "")


def f2u(x):
    return struct.unpack("<I", struct.pack("<f", x))[0]


CSCALE = (192 ** -0.5) * math.log2(math.e)

COST = dict(mfma=8, valu=4, trans=8, salu=4, dsr=4, dsw=8, dma=16, store=16, bar=4, label=0, branch=4, nop=4,
            wait=4, waitvm=4)


class Ins:
    _seq = 0

    def __init__(self, txt, kind, rd=(), wr=(), pos=None, ws=1, **meta):
        self.txt = txt
        self.kind = kind
        self.rd = [(r, None) if isinstance(r, str) else r for r in rd]
        self.wr = [(r, None) if isinstance(r, str) else r for r in wr]
        self.pos = pos
        self.ws = ws
        self.meta = meta
        self.seq = Ins._seq
        Ins._seq += 1

    @property
    def cost(self):
        return COST[self.kind] * self.ws if self.kind in ("salu", "nop") else COST[self.kind]


def R(f, n, cnt=1):
    return [f"{f}{n + i}" for i in range(cnt)]


def rs(f, n, cnt):
    return f"{f}{n}" if cnt == 1 else f"{f}[{n}:{n + cnt - 1}]"


def tagged(regs, tag):
    return [(r, f"{tag}.{i}") for i, r in enumerate(regs)]


S_W = 3
S_Q, S_K, S_V, S_O = 16, 20, 24, 28
S_C, S_NC, S_T = 32, 33, 34
S_W3072, S_W1024, S_WQO = 35, 36, 37
S_IT = 38
S_SOFF = 39
S_RET = 40
S_CMP = 42
S_TMP = 48
S_TMP2 = 49
S_PAR = 50
S_DBG = 52
S_ST = 56
S_SOFF2 = 51
V_FR = 0
V_KA = 16
V_VOK, V_VOV = 20, 21
V_NMC = 22
V_L = 25
V_TM = 28
V_LANE = 31
BIG = 32
SB0, SB1 = 160, 208
F0, F1 = 184, 232
V_VA0, V_VA1, V_STR = 16, 17, 18
V_ET = F0
V_PK = F0 + 4
V_RB = F0 + 12
V_STW = F0 + 20
V_PARK = F1
V_D0 = BIG + 48
V_D1 = BIG + 72
V_DRB = BIG + 96
V_DSTW = BIG + 104
V_DSTR = BIG + 108
V_SAVE = BIG + 120
S_OP = 12
S_CODE = 44
V_TMPA = 19
V_QA = [28, 29, 30, 22]


def Sreg(t, b):
    if t == 0:
        return BIG + 16 * b
    return (SB1 if t % 2 else SB0) + 16 * b


def Ploc(t, b):
    n = 3 * t + b
    if n < 14:
        return ("a", 144 + 8 * n)
    if t <= 9:
        return ("v", BIG + 8 * (n - 14))
    return ("v", (SB0 if t == 10 else SB1) + 8 * b)


def Qreg(b, ks):
    return 48 * (ks // 4) + 16 * b + 4 * (ks % 4)


def Oset(T, sg):
    return (2 * sg + T) % 3


def valu(txt, rd, wr, **m):
    return Ins(txt, "valu", rd, wr, **m)


def salu(txt, rd=(), wr=(), **m):
    return Ins(txt, "salu", rd, wr, **m)


def spread(lst, a, b):
    tot = sum(i.cost for i in lst)
    c = 0
    for i in lst:
        i.pos = a + (b - a) * (c / tot if tot else 0)
        c += i.cost
    return lst


def lane_const(kind, dst, t1, t2):
    L = f"v{V_LANE}"
    d, x, y = f"v{dst}", f"v{t1}", f"v{t2}"
    o = []

    def e(txt, rd, wr, last=False):
        o.append(valu(txt, rd, [(wr, f"const:{kind}" if last else None)]))
    LR = (L, "lane")
    if kind == "baseK":
        e(f"v_bfe_u32 {x}, {L}, 1, 3", [LR], x)
        e(f"v_lshrrev_b32 {y}, 5, {L}", [LR], y)
        e(f"v_xor_b32 {x}, {x}, {y}", [x, y], x)
        e(f"v_lshlrev_b32 {d}, 4, {x}", [x], d)
        e(f"v_and_b32 {x}, 7, {L}", [LR], x)
        e(f"v_lshl_add_u32 {d}, {x}, 7, {d}", [x, d], d)
        e(f"v_bfe_u32 {x}, {L}, 3, 2", [LR], x)
        e(f"v_mul_u32_u24 {x}, 3072, {x}", [x], x)
        e(f"v_add_u32 {d}, {d}, {x}", [d, x], d, True)
    elif kind == "baseQ":
        e(f"v_bfe_u32 {x}, {L}, 1, 2", [LR], x)
        e(f"v_or_b32 {x}, s{S_PAR}, {x}", [x], x)
        e(f"v_lshrrev_b32 {y}, 5, {L}", [LR], y)
        e(f"v_xor_b32 {x}, {x}, {y}", [x, y], x)
        e(f"v_lshlrev_b32 {d}, 4, {x}", [x], d)
        e(f"v_and_b32 {x}, 7, {L}", [LR], x)
        e(f"v_lshl_add_u32 {d}, {x}, 7, {d}", [x, d], d)
        e(f"v_bfe_u32 {x}, {L}, 3, 2", [LR], x)
        e(f"v_lshl_add_u32 {d}, {x}, 12, {d}", [x, d], d)
        e(f"v_add_u32 {d}, s{S_W1024}, {d}", [d], d, True)
    elif kind == "voffK":
        e(f"v_lshrrev_b32 {x}, 4, {L}", [LR], x)
        e(f"v_or_b32 {x}, s{S_PAR}, {x}", [x], x)
        e(f"v_and_b32 {y}, 7, {L}", [LR], y)
        e(f"v_xor_b32 {x}, {x}, {y}", [x, y], x)
        e(f"v_lshlrev_b32 {d}, 4, {x}", [x], d)
        e(f"v_lshrrev_b32 {x}, 3, {L}", [LR], x)
        e(f"v_mul_u32_u24 {x}, 384, {x}", [x], x)
        e(f"v_add3_u32 {d}, {d}, {x}, s{S_W3072}", [d, x], d, True)
    elif kind == "voffV":
        e(f"v_bfe_u32 {x}, {L}, 2, 3", [LR], x)
        e(f"v_mul_u32_u24 {d}, 384, {x}", [x], d)
        e(f"v_lshrrev_b32 {x}, 5, {L}", [LR], x)
        e(f"v_lshl_add_u32 {d}, {x}, 6, {d}", [x, d], d)
        e(f"v_and_b32 {x}, 3, {L}", [LR], x)
        e(f"v_lshl_add_u32 {d}, {x}, 4, {d}", [x, d], d)
        e(f"v_mov_b32 {x}, s{S_W3072}", [], x)
        e(f"v_mad_u32_u24 {d}, {x}, 3, {d}", [x, d], d, True)
    elif kind == "baseV":
        e(f"v_lshrrev_b32 {x}, 5, {L}", [LR], x)
        e(f"v_lshlrev_b32 {d}, 8, {x}", [x], d)
        e(f"v_bfe_u32 {x}, {L}, 2, 2", [LR], x)
        e(f"v_lshl_add_u32 {d}, {x}, 6, {d}", [x, d], d)
        e(f"v_and_b32 {x}, 1, {L}", [LR], x)
        e(f"v_lshl_add_u32 {d}, {x}, 5, {d}", [x, d], d)
        e(f"v_and_b32 {x}, 16, {L}", [LR], x)
        e(f"v_add_u32 {d}, {d}, {x}", [x, d], d)
        e(f"v_bfe_u32 {x}, {L}, 1, 1", [LR], x)
        e(f"v_lshl_add_u32 {d}, {x}, 3, {d}", [x, d], d, True)
    elif kind == "stW":
        e(f"v_lshrrev_b32 {x}, 5, {L}", [LR], x)
        e(f"v_lshlrev_b32 {x}, 1, {x}", [x], x)
        e(f"v_and_b32 {y}, 7, {L}", [LR], y)
        e(f"v_xor_b32 {x}, {x}, {y}", [x, y], x)
        e(f"v_lshlrev_b32 {d}, 4, {x}", [x], d)
        e(f"v_and_b32 {x}, 31, {L}", [LR], x)
        e(f"v_lshl_add_u32 {d}, {x}, 7, {d}", [x, d], d)
        e(f"v_mov_b32 {x}, s{S_W1024}", [], x)
        e(f"v_lshl_add_u32 {d}, {x}, 2, {d}", [x, d], d)
        e(f"v_add_u32 {d}, {STG}, {d}", [d], d, True)
    elif kind == "stR":
        e(f"v_lshrrev_b32 {x}, 4, {L}", [LR], x)
        e(f"v_or_b32 {x}, s{S_PAR}, {x}", [x], x)
        e(f"v_and_b32 {y}, 7, {L}", [LR], y)
        e(f"v_xor_b32 {x}, {x}, {y}", [x, y], x)
        e(f"v_lshrrev_b32 {y}, 3, {L}", [LR], y)
        e(f"v_xor_b32 {x}, {x}, {y}", [x, y], x)
        e(f"v_lshlrev_b32 {d}, 4, {x}", [x], d)
        e(f"v_lshl_add_u32 {d}, {y}, 7, {d}", [y, d], d)
        e(f"v_mov_b32 {x}, s{S_W1024}", [], x)
        e(f"v_lshl_add_u32 {d}, {x}, 2, {d}", [x, d], d)
        e(f"v_add_u32 {d}, {STG}, {d}", [d], d, True)
    else:
        raise ValueError(kind)
    return o


def dma(data, slot, m0base, m0const, voff, vtag, srd, soff_txt, inst_off):
    off = f" offset:{inst_off}" if inst_off else ""
    tg = f"dma{data}{m0const}"
    o = [salu(f"s_add_u32 m0, s{m0base}, {m0const - inst_off}", wr=[("m0", tg), "scc"])]
    if soff_txt:
        o.append(salu(soff_txt, wr=[(f"s{S_SOFF}", soff_txt), "scc"]))
        dma.last = soff_txt
    o.append(Ins(f"buffer_load_dwordx4 v{voff}, s[{srd}:{srd + 3}], s{S_SOFF} offen{off} {LDNT} lds", "dma",
                 rd=[(f"v{voff}", vtag), ("m0", tg), (f"s{S_SOFF}", dma.last)], data=data, slot=slot))
    return o


def dma_K(t):
    return [dma(("K", t), t, S_W3072, t * SLOT + g * 1024, V_VOK, "const:voffK", S_K,
                f"s_mov_b32 s{S_SOFF}, {t * SLOT}" if g == 0 else None, g * 128) for g in range(3)]


def dma_V(j):
    sg, i = j // 4, j % 4
    return [dma(("V", j), j, S_W3072, j * SLOT + n * 1024, V_VOV, "const:voffV", S_V,
                f"s_mov_b32 s{S_SOFF}, {(96 * i + 8 * n) * 384 + sg * 128}", 0) for n in range(3)]


def dma_Q(slot):
    g = slot // 4
    o = []
    for k in range(3):
        n = (slot % 4) * 3 + k
        o.append(dma(("Q", g), slot, S_W1024, g * 49152 + n * 4096, V_VOK, "const:voffK", S_Q,
                     f"s_add_u32 s{S_SOFF}, s{S_WQO}, {n * 8 * 384 + g * 128}", 0))
    return o


def barrier(need, name=""):
    return Ins("s_barrier", "bar", need=need, name=name)


def waitvm(need):
    return Ins("", "waitvm", need=need)


STAMPS = []
STAMPOP = "s_memrealtime" if OPT["stamp"] == 2 else "s_memtime"


def stamp(name):
    n = len(STAMPS)
    STAMPS.append(name)
    assert n < 40
    t = f"s_mov_b32 s{60 + n - 1}, s{S_ST}\n" if n else ""
    return Ins(t + f"{STAMPOP} s[{S_ST}:{S_ST + 1}]", "salu", smem=True, ws=2)


def add_stamps(seq):
    out = []
    for x in seq:
        if x.kind == "bar" or x.meta.get("stampbefore"):
            out.append(stamp("pre-" + x.meta.get("name", "x")) if x.meta.get("stampbefore") else None)
        out.append(x)
        if x.kind == "bar" or x.kind == "label" or x.meta.get("stampafter"):
            out.append(stamp(x.meta.get("name", x.txt)))
    return [x for x in out if x is not None]


def stamp_dump():
    n = len(STAMPS)
    t = [f"s_waitcnt lgkmcnt(0)", f"s_mov_b32 s{60 + n - 1}, s{S_ST}", f"s_memrealtime s[{S_ST}:{S_ST + 1}]"]
    for i in range(n):
        t.append(f"v_writelane_b32 v{F0}, s{60 + i}, {i}")
    t.append("s_waitcnt lgkmcnt(0)")
    t.append(f"v_writelane_b32 v{F0}, s{S_ST}, 62")
    t.append(f"v_writelane_b32 v{F0}, s58, 63")
    t.append(f"s_lshl_b32 s{S_TMP}, s2, 2\ns_add_u32 s{S_TMP}, s{S_TMP}, s{S_W}\ns_lshl_b32 s{S_TMP}, s{S_TMP}, 1\n"
             f"s_add_u32 s{S_TMP}, s{S_TMP}, s{S_IT}\ns_lshl_b32 s{S_TMP}, s{S_TMP}, 8")
    t.append(f"v_lshlrev_b32 v{F0 + 1}, 2, v{V_LANE}")
    t.append(f"buffer_store_dword v{F0}, v{F0 + 1}, s[{S_DBG}:{S_DBG + 3}], s{S_TMP} offen")
    return Ins("\n".join(t), "store", ws=20, data=("D", 0))


def q_step(g):
    o = lane_const("baseQ", V_QA[0], V_QA[1], V_QA[2])
    if g:
        o.append(valu(f"v_add_u32 v{V_QA[0]}, {g * 49152}, v{V_QA[0]}", [(f"v{V_QA[0]}", "const:baseQ")],
                      [(f"v{V_QA[0]}", "const:baseQ")]))
    for k in range(1, 4):
        o.append(valu(f"v_xor_b32 v{V_QA[k]}, {32 * k}, v{V_QA[0]}", [(f"v{V_QA[0]}", "const:baseQ")],
                      [(f"v{V_QA[k]}", f"qa{k}")]))
    o.append(waitvm([("Q", g)]))
    for k in range(4):
        for b in range(3):
            a = Qreg(b, 4 * g + k)
            o.append(Ins(f"ds_read_b128 a[{a}:{a + 3}], v{V_QA[k]} offset:{b * 16384}", "dsr",
                         rd=[(f"v{V_QA[k]}", f"qa{k}" if k else "const:baseQ")],
                         wr=tagged(R("a", a, 4), f"Q({b},{4 * g + k})"),
                         data=("Q", g), slots=[4 * g + s for s in range(4)], private=True))
    return o


def k_addr_setup(t1, t2):
    o = lane_const("baseK", V_KA, t1, t2)
    for k in range(1, 4):
        o.append(valu(f"v_xor_b32 v{V_KA + k}, {32 * k}, v{V_KA}", [(f"v{V_KA}", "const:baseK")],
                      [(f"v{V_KA + k}", "const:baseK")]))
    return o


def merge(x, y, yfrac=0.85):
    if not x:
        return list(y)
    if not y:
        return list(x)
    tx = sum(i.cost for i in x)
    ty = sum(i.cost for i in y)
    items = []
    c = 0
    for n, i in enumerate(x):
        items.append((c / tx, 0, n, i))
        c += i.cost
    c = 0
    for n, i in enumerate(y):
        items.append((yfrac * c / ty, 1, n, i))
        c += i.cost
    items.sort(key=lambda z: z[:3])
    return [z[3] for z in items]


def sm_unit(t, b):
    s = Sreg(t, b)
    tm, nmc, l = f"v{V_TM + b}", f"v{V_NMC + b}", f"v{V_L + b}"
    St = lambda r: (f"v{s + r}", f"S({t},{b})@11.{r}")
    Xt = lambda r: (f"v{s + r}", f"X({t},{b}).{r}")
    Et = lambda r: (f"v{s + r}", f"E({t},{b}).{r}")

    def fma(r):
        return valu(f"v_fma_f32 v{s + r}, v{s + r}, s{S_C}, {nmc}", [St(r), (nmc, f"nmc{b}")], [Xt(r)])

    def maxchain(src):
        o = [valu(f"v_max3_f32 {tm}, v{s}, v{s + 1}, v{s + 2}", [src(0), src(1), src(2)], [(tm, f"tm{b}")])]
        for r in range(3, 15, 2):
            o.append(valu(f"v_max3_f32 {tm}, {tm}, v{s + r}, v{s + r + 1}",
                          [(tm, f"tm{b}"), src(r), src(r + 1)], [(tm, f"tm{b}")]))
        o.append(valu(f"v_max_f32 {tm}, {tm}, v{s + 15}", [(tm, f"tm{b}"), src(15)], [(tm, f"tm{b}")]))
        return o
    A = []
    f = [fma(r) for r in range(16)]
    br = None
    if t == 0:
        A += maxchain(St)
        A.append(valu(f"v_mov_b32 {nmc}, {tm}", [(tm, f"tm{b}")], [(nmc, "tmp")]))
        A.append(valu(f"v_permlane32_swap_b32 {tm}, {nmc}", [(tm, f"tm{b}"), (nmc, "tmp")],
                      [(tm, "tmA"), (nmc, "tmB")], permlane=True))
        A.append(valu(f"v_max_f32 {tm}, {tm}, {nmc}", [(tm, "tmA"), (nmc, "tmB")], [(tm, "tmC")]))
        A.append(valu(f"v_mul_f32 {nmc}, s{S_NC}, {tm}", [(tm, "tmC")], [(nmc, f"nmc{b}")]))
        A += f
    elif OPT["nomax"]:
        A += f
    else:
        mc = maxchain(Xt)
        A += f[0:4] + [mc[0]]
        k = 4
        for i in range(1, 8):
            A += f[k:k + 2]
            k += 2
            A.append(mc[i])
        A.append(valu(f"v_cmp_lt_f32 vcc, s{S_T}, {tm}", [(tm, f"tm{b}")], [("vcc", f"chk{t},{b}")]))
        br = Ins(f"s_cbranch_vccnz L_rare{t}_{b}\nL_ret{t}_{b}:", "branch", rd=[("vcc", f"chk{t},{b}")], check=(t, b))
        A.append(br)
    pf, pr = Ploc(t, b)
    ex = [Ins(f"v_exp_f32 v{s + r}, v{s + r}", "trans", [Xt(r)], [Et(r)]) for r in range(16)]
    if br is not None:
        ex[0].meta["after"] = [br]

    def tail(k):
        o = []
        r0, r1 = 2 * k, 2 * k + 1
        if t == 0 and k == 0:
            o.append(valu(f"v_add_f32 {l}, v{s + r0}, v{s + r1}", [Et(r0), Et(r1)], [(l, f"l{b}")]))
        else:
            o.append(valu(f"v_add_f32 {l}, {l}, v{s + r0}", [(l, f"l{b}"), Et(r0)], [(l, f"l{b}")]))
            o.append(valu(f"v_add_f32 {l}, {l}, v{s + r1}", [(l, f"l{b}"), Et(r1)], [(l, f"l{b}")]))
        if pf == "v":
            o.append(valu(f"v_cvt_pk_bf16_f32 v{pr + k}, v{s + r0}, v{s + r1}", [Et(r0), Et(r1)],
                          [(f"v{pr + k}", f"P({t},{b}).{k}")]))
        else:
            o.append(valu(f"v_cvt_pk_bf16_f32 v{s + r0}, v{s + r0}, v{s + r1}", [Et(r0), Et(r1)],
                          [(f"v{s + r0}", "ptmp")]))
            o.append(valu(f"v_accvgpr_write_b32 a{pr + k}, v{s + r0}", [(f"v{s + r0}", "ptmp")],
                          [(f"a{pr + k}", f"P({t},{b}).{k}")]))
        return o
    Bp = []
    for k in range(8):
        tl = tail(k - 1) if k else []
        Bp += [ex[2 * k]] + tl[:2] + [ex[2 * k + 1]] + tl[2:]
    Bp += tail(7)
    return A, Bp


def softmax(t):
    u = [sm_unit(t, b) for b in range(3)]
    o = list(u[0][0])
    a1 = u[1][0]
    o += a1[:5]
    o += merge(u[0][1], a1[5:])
    o += merge(u[1][1], u[2][0])
    o += u[2][1]
    return o


def l_final():
    o = []
    for b in range(3):
        l, x = f"v{V_L + b}", f"v{V_NMC + b}"
        o.append(valu(f"v_mov_b32 {x}, {l}", [(l, f"l{b}")], [(x, "tmp")]))
    for b in range(3):
        l, x = f"v{V_L + b}", f"v{V_NMC + b}"
        o.append(valu(f"v_permlane32_swap_b32 {l}, {x}", [(l, f"l{b}"), (x, "tmp")], [(l, "lA"), (x, "lB")],
                      permlane=True))
    for b in range(3):
        l, x = f"v{V_L + b}", f"v{V_NMC + b}"
        o.append(valu(f"v_add_f32 {l}, {l}, {x}", [(l, "lA"), (x, "lB")], [(l, "lC")]))
    for b in range(3):
        l = f"v{V_L + b}"
        o.append(Ins(f"v_rcp_f32 {l}, {l}", "trans", [(l, "lC")], [(l, f"inv{b}")]))
    return o


def stage_store(sg, b, src0, src1, stw, strd, rbase, srd, tagw, tagr):
    wr = []
    for TT in range(2):
        for e in range(2):
            src = (src0 if TT == 0 else src1) + 4 * e
            tg = f"OP({sg},{TT},{b})"
            aw = stw + 2 * TT + e
            wr.append(Ins(f"ds_write_b128 v{aw}, v[{src}:{src + 3}]", "dsw",
                          rd=[(f"v{aw}", f"{tagw}{2 * TT + e}")] + [(f"v{src + i}", f"{tg}.{4 * e + i}") for i in range(4)]))
    rds, sts = [], []
    for i in range(4):
        rb = rbase + 4 * (i % 2)
        rds.append(Ins(f"ds_read_b128 v[{rb}:{rb + 3}], v{strd} offset:{i * 1024}", "dsr",
                       rd=[(f"v{strd}", tagr)], wr=tagged(R("v", rb, 4), f"rb{i}")))
        so = f"so{sg},{b},{i}"
        sts.append([salu(f"s_add_u32 s{S_SOFF2}, s{S_WQO}, {(32 * b + 8 * i) * 384 + sg * 128}",
                         wr=[(f"s{S_SOFF2}", so), "scc"]),
                    Ins(f"buffer_store_dwordx4 v[{rb}:{rb + 3}], v{V_VOK}, s[{srd}:{srd + 3}], s{S_SOFF2} offen {STNT}",
                        "store", rd=[(f"v{V_VOK}", "const:voffK"), (f"s{S_SOFF2}", so)] + tagged(R("v", rb, 4), f"rb{i}"),
                        data=("O", sg))])
    return wr, [rds[0], rds[1]] + sts[0] + [rds[2]] + sts[1] + [rds[3]] + sts[2] + sts[3]


def evac(T, sg, defer=False):
    X = Oset(T, sg)
    o = []
    park = V_D0 if sg == 2 else V_PARK
    for b in range(3):
        a = 48 * X + 16 * b
        inv = (f"v{V_L + b}", f"inv{b}")
        dst = park + 8 * b if T == 0 else (V_D1 + 8 * b if defer else V_PK)
        dtag = f"OP({sg},{T},{b})"

        def rd(k):
            t0 = V_ET + 2 * (k % 2)
            return [valu(f"v_accvgpr_read_b32 v{t0 + e}, a{a + 2 * k + e}",
                         [(f"a{a + 2 * k + e}", f"O({sg},{T},{b})@23.{2 * k + e}")], [(f"v{t0 + e}", f"et{k}.{e}")])
                    for e in range(2)]

        def fin(k):
            t0 = V_ET + 2 * (k % 2)
            r = [valu(f"v_mul_f32 v{t0 + e}, v{t0 + e}, {inv[0]}", [(f"v{t0 + e}", f"et{k}.{e}"), inv],
                      [(f"v{t0 + e}", f"em{k}.{e}")]) for e in range(2)]
            r.append(valu(f"v_cvt_pk_bf16_f32 v{dst + k}, v{t0}, v{t0 + 1}",
                          [(f"v{t0}", f"em{k}.0"), (f"v{t0 + 1}", f"em{k}.1")], [(f"v{dst + k}", f"{dtag}.{k}")]))
            return r
        o += rd(0)
        for k in range(8):
            if k < 7:
                o += rd(k + 1)
            o += fin(k)
        if T == 1 and not defer:
            wr, rest = stage_store(sg, b, park + 8 * b, V_PK, V_STW, V_STR, V_RB, S_O, "stw", "const:stR")
            o += wr
            o.append(("deferred", rest))
    out = []
    pend = []
    cnt = 0
    for x in o:
        if isinstance(x, tuple):
            out += pend
            pend = list(x[1])
            out += pend[:2]
            pend = pend[2:]
            cnt = 0
            continue
        if x.kind == "dsw" and pend:
            out += pend
            pend = []
        out.append(x)
        cnt += 1
        if pend and cnt % 4 == 0:
            out.append(pend.pop(0))
    out += pend
    return out


def deferred_stores():
    o = []
    for b in range(3):
        wr, rest = stage_store(2, b, V_D0 + 8 * b, V_D1 + 8 * b, V_DSTW, V_DSTR, V_DRB, S_OP, "dstw", "dstr")
        o += wr + rest
    return o


def copy_stage_addrs():
    o = [valu(f"v_mov_b32 v{V_DSTW + k}, v{V_STW + k}", [(f"v{V_STW + k}", f"stw{k}")], [(f"v{V_DSTW + k}", f"dstw{k}")])
         for k in range(4)]
    o.append(valu(f"v_mov_b32 v{V_DSTR}, v{V_STR}", [(f"v{V_STR}", "const:stR")], [(f"v{V_DSTR}", "dstr")]))
    return o


def phase2_consts():
    o = lane_const("stW", V_STW, V_ET, V_ET + 1)
    o[-1].wr = [(f"v{V_STW}", "stw0")]
    for k in range(1, 4):
        x = (16 if k & 1 else 0) + (64 if k & 2 else 0)
        o.append(valu(f"v_xor_b32 v{V_STW + k}, {x}, v{V_STW}", [(f"v{V_STW}", "stw0")], [(f"v{V_STW + k}", f"stw{k}")]))
    o += lane_const("stR", V_STR, V_ET, V_ET + 1)
    return o


def build_body():
    ins = []
    frags = []
    spine = 0
    for t in range(12):
        for ks in range(12):
            n = len(frags)
            frags.append(("K", t, ks))
            fb = V_FR + 4 * (n % 4)
            for b in range(3):
                s = Sreg(t, b)
                q = Qreg(b, ks)
                c = "0" if ks == 0 else f"v[{s}:{s + 15}]"
                rd = tagged(R("v", fb, 4), f"K({t},{ks})") + tagged(R("a", q, 4), f"Q({b},{ks})")
                if ks:
                    rd += tagged(R("v", s, 16), f"S({t},{b})@{ks - 1}")
                ins.append(Ins(f"v_mfma_f32_32x32x16_bf16 v[{s}:{s + 15}], v[{fb}:{fb + 3}], a[{q}:{q + 3}], {c}",
                               "mfma", rd, tagged(R("v", s, 16), f"S({t},{b})@{ks}"), pos=spine,
                               cregs=set(R("v", s, 16)) if ks else set()))
                spine += 1
    rpos = {}
    for rho in range(72 + DELTA):
        rpos[rho] = spine
        for T in range(2):
            n1 = rho - (DELTA if T else 0)
            if not (0 <= n1 < 72):
                continue
            sg, s = n1 // 24, n1 % 24
            n = len(frags)
            frags.append(("V", T, sg, s))
            fb = V_FR + 4 * (n % 4)
            X = Oset(T, sg)
            for b in range(3):
                a = 48 * X + 16 * b
                pf, pr = Ploc(s // 2, b)
                pr += 4 * (s % 2)
                c = "0" if s == 0 else f"a[{a}:{a + 15}]"
                rd = tagged(R("v", fb, 4), f"V({T},{sg},{s})") + \
                    [(f"{pf}{pr + i}", f"P({s // 2},{b}).{4 * (s % 2) + i}") for i in range(4)]
                if s:
                    rd += tagged(R("a", a, 16), f"O({sg},{T},{b})@{s - 1}")
                ins.append(Ins(f"v_mfma_f32_32x32x16_bf16 a[{a}:{a + 15}], v[{fb}:{fb + 3}], {pf}[{pr}:{pr + 3}], {c}",
                               "mfma", rd, tagged(R("a", a, 16), f"O({sg},{T},{b})@{s}"), pos=spine,
                               cregs=set(R("a", a, 16)) if s else set()))
                spine += 1
    rpos[72 + DELTA] = spine
    END = spine
    spine_ins = ins
    streams = []
    fs = []
    pre = []
    first_read, last_read = {}, {}
    bars = []
    vwin = [0, 0]
    aux = []
    for n, fr in enumerate(frags):
        fb = V_FR + 4 * (n % 4)
        p = 3 * n - LA
        if fr[0] == "K":
            _, t, ks = fr
            g, k4 = ks // 4, ks % 4
            if t == 6 and ks < 4:
                aux.append(valu(f"v_add_u32 v{V_KA + k4}, {6 * SLOT}, v{V_KA + k4}",
                                [(f"v{V_KA + k4}", "const:baseK")], [(f"v{V_KA + k4}", "baseK1")], pos=p - 1.5))
            off = (t % 6) * SLOT + g * 1024
            lst = [Ins(f"ds_read_b128 v[{fb}:{fb + 3}], v{V_KA + k4} offset:{off}", "dsr",
                       rd=[(f"v{V_KA + k4}", "const:baseK" if t < 6 else "baseK1")],
                       wr=tagged(R("v", fb, 4), f"K({t},{ks})"), pos=p, data=("K", t), slots=[t])]
            d = ("K", t)
        else:
            _, T, sg, s = fr
            j = 4 * sg + s // 6
            va = V_VA1 if T else V_VA0
            w = j // 5
            if w != vwin[T]:
                aux.append(valu(f"v_add_u32 v{va}, {5 * SLOT}, v{va}", [(f"v{va}", f"va{T}.{vwin[T]}")],
                                [(f"v{va}", f"va{T}.{w}")], pos=p - 1.4))
                vwin[T] = w
            lst = []
            tg = tagged(R("v", fb, 4), f"V({T},{sg},{s})")
            for jj in range(2):
                off = (j % 5) * SLOT + (2 * (s % 6) + jj) * 1024 + T * 512
                lst.append(Ins(f"ds_read_b64_tr_b16 v[{fb + 2 * jj}:{fb + 2 * jj + 1}], v{va} offset:{off}", "dsr",
                               rd=[(f"v{va}", f"va{T}.{w}")], wr=tg[2 * jj:2 * jj + 2], pos=p + jj,
                               data=("V", j), slots=[j]))
            d = ("V", j)
        if d not in first_read and d != ("K", 0):
            bb = barrier([d], f"{d[0]}{d[1]}")
            bb.pos = p - 1
            bars.append(bb)
            fs.append(bb)
        for x in lst:
            first_read.setdefault(d, x.pos)
            last_read[d] = x.pos
            (pre if x.pos < 0 else fs).append(x)
    lastbar = max(x.pos for x in bars)
    for j in range(12):
        if last_read[("V", j)] + 1.5 >= lastbar and j < 11:
            bb = barrier([], f"rel{j}")
            bb.pos = last_read[("V", j)] + 4
            lastbar = bb.pos
            bars.append(bb)
            fs.append(bb)
    fs.sort(key=lambda x: (x.pos, x.seq))
    bars.sort(key=lambda x: x.pos)
    streams.append(("frag", fs))
    kl = last_read[("K", 11)]
    vs = lane_const("baseV", V_VA0, V_VA1, V_VA1)
    vs[-1].wr = [(f"v{V_VA0}", "va0.0")]
    vs.append(valu(f"v_mov_b32 v{V_VA1}, v{V_VA0}", [(f"v{V_VA0}", "va0.0")], [(f"v{V_VA1}", "va1.0")]))
    spread(vs, kl - 5.0, first_read[("V", 0)] - 1.6)
    aux += vs
    aux.sort(key=lambda x: (x.pos, x.seq))
    streams.append(("aux", aux))
    main = []
    for t in range(12):
        sm = softmax(t)
        a = 36 * (t + 1) + SMSTART
        b = 36 * (t + 2) - 0.2 if t < 11 else 36 * 12 + 40
        spread(sm, a, b)
        main += sm
        if t == 11:
            for x in sm:
                if x.meta.get("check"):
                    assert x.pos + 2 < rpos[DELTA], "check(11) must precede T1 start"
    lf = l_final()
    spread(lf, 432 + 45, 432 + 50)
    main += lf
    p2c = phase2_consts()
    spread(p2c, 432 + 51, 432 + 62)
    main += p2c
    tail = []
    for sg in range(3):
        e0 = evac(0, sg)
        spread(e0, rpos[24 * sg + 24] + (1.0 if sg < 2 else 3.0), rpos[24 * sg + 24 + DELTA] - 0.5)
        e1 = evac(1, sg)
        if sg < 2:
            main += e0
            spread(e1, rpos[24 * sg + 24 + DELTA] + 3.2, rpos[24 * sg + 48] - 0.5)
            main += e1
        else:
            tail = e1
            main += e0
    streams.append(("main", main))
    dst = deferred_stores()
    nst = 0
    for x in dst:
        x.pos = OPT["dst0"] + nst * OPT["dstpace"]
        if x.kind == "store":
            nst += 1
    streams.append(("dst", dst))
    qs = q_step(0)
    spread(qs, rpos[72] - 8, rpos[72] + 14)
    for x in qs:
        if x.kind == "dsr":
            x.pos = max(x.pos, rpos[72] + 1)
    streams.append(("qs", qs))

    def bar_after(p):
        for x in bars:
            if x.pos > p + 1.5:
                return x
        return None
    step = NWG * HB
    ds = []
    post = []
    tpos = [0.0]

    def put(groups, dep, pace):
        for g in groups:
            if dep is None:
                post.extend(g)
                continue
            e = dep.pos + 2 if dep is not True else 0
            tpos[0] = max(tpos[0] + pace, e)
            for k, x in enumerate(g):
                x.pos = tpos[0] - (len(g) - 1 - k) * 1.0
            if dep is not True:
                g[-1].meta["after"] = [dep]
            ds.extend(g)

    def pace():
        return OPT["pace1"] if tpos[0] < 432 else OPT["pace2"]
    tpos[0] = -OPT["pace1"] + 3
    for t in range(NK0, 12):
        put(dma_K(t), True, pace())
    x = salu(f"s_cmp_lt_u32 s{S_IT}, {NHEADS_PER_WG - 1}\ns_cselect_b32 s{S_TMP}, {HB}, 0\n"
             f"s_cselect_b32 s{S_TMP2}, {step}, 0\n"
             f"s_add_u32 s{S_Q}, s{S_Q}, s{S_TMP2}\ns_addc_u32 s{S_Q + 1}, s{S_Q + 1}, 0\n"
             f"s_add_u32 s{S_K}, s{S_K}, s{S_TMP2}\ns_addc_u32 s{S_K + 1}, s{S_K + 1}, 0\n"
             f"s_mov_b32 s{S_Q + 2}, s{S_TMP}\ns_mov_b32 s{S_K + 2}, s{S_TMP}", ws=9, wr=["scc"])
    x.pos = tpos[0] + 1
    ds.append(x)
    for j in range(12):
        put(dma_V(j), bar_after(last_read[("K", j)]), pace())
    for j in range(12):
        dep = bar_after(last_read[("V", j)])
        put(dma_Q(j), dep, OPT["pace3"])
    for t in range(NK0):
        put(dma_K(t), None, 0)
    streams.append(("dma", ds))
    body = schedule(spine_ins, streams)
    seen = False
    for x in body:
        if x.kind == "mfma" and x.wr[0][1].startswith("O(0,1,"):
            seen = True
        assert not (seen and x.meta.get("check")), "check after T1 start"
    return pre, body, tail, post


SLOTK = ("salu", "dsr", "dsw", "dma", "store", "bar", "waitvm", "branch")
LIGHT = ("salu", "bar", "waitvm", "branch")


def schedule(spine, streams):
    out = []
    emitted = set()
    ptr = {n: 0 for n, _ in streams}
    queue = {n: [] for n, _ in streams}
    items = dict(streams)

    def deps_ok(x):
        return all(id(d) in emitted for d in x.meta.get("after", []))

    def conflict(x, q):
        xr = set(r for r, _ in x.rd)
        xw = set(r for r, _ in x.wr) - {"scc"}
        for y in q:
            yr = set(r for r, _ in y.rd)
            yw = set(r for r, _ in y.wr) - {"scc"}
            if xw & (yr | yw) or xr & yw:
                return True
        return False

    def emit(x):
        out.append(x)
        emitted.add(id(x))

    def promote(lim):
        for n, lst in streams:
            while ptr[n] < len(lst) and lst[ptr[n]].kind in SLOTK and lst[ptr[n]].pos <= lim:
                queue[n].append(lst[ptr[n]])
                ptr[n] += 1

    N = len(spine)
    for g in range(N + 1):
        last = g == N
        if not last:
            emit(spine[g])
        lim = g + 0.999 if not last else 1e9
        promote(lim)
        nl = 1 if g % 3 == 2 else 0
        nm = 0
        slot = []
        for phase in ("light", "mem", "force"):
            progress = True
            while progress:
                progress = False
                for n, _ in streams:
                    q = queue[n]
                    if not q:
                        continue
                    x = q[0]
                    if not deps_ok(x):
                        continue
                    force = n == "frag" or x.pos < g - 3 or last
                    if phase == "light":
                        if x.kind not in LIGHT or (nl >= 1 and not force):
                            continue
                        nl += 1
                    elif phase == "mem":
                        if x.kind in LIGHT or (nm >= 1 and not force):
                            continue
                        nm += 1
                    elif not force:
                        continue
                    q.pop(0)
                    emit(x)
                    progress = True
                    promote(lim)
        while True:
            best = None
            for n, lst in streams:
                if ptr[n] >= len(lst):
                    continue
                x = lst[ptr[n]]
                if x.pos > lim:
                    continue
                if x.kind in SLOTK:
                    queue[n].append(x)
                    ptr[n] += 1
                    best = "again"
                    break
                if not deps_ok(x) or conflict(x, queue[n]):
                    continue
                if best is None or x.pos < best[1].pos:
                    best = (n, x)
            if best is None:
                break
            if best == "again":
                continue
            emit(best[1])
            ptr[best[0]] += 1
    while any(queue[n] for n in queue) or any(ptr[n] < len(l) for n, l in streams):
        moved = False
        for n, lst in streams:
            while queue[n] and deps_ok(queue[n][0]):
                emit(queue[n].pop(0))
                moved = True
            while not queue[n] and ptr[n] < len(lst) and deps_ok(lst[ptr[n]]):
                emit(lst[ptr[n]])
                ptr[n] += 1
                moved = True
        assert moved
    return out


def flat(groups):
    return [x for g in groups for x in g]


def build():
    pro = []
    P = pro.append
    P(salu(f"s_cmp_ge_u32 s2, {NWG}\ns_cbranch_scc1 L_end", ws=2))
    P(Ins("s_load_dwordx8 s[4:11], s[0:1], 0", "salu", smem=True))
    if OPT["stamp"]:
        P(Ins(f"s_load_dwordx2 s[{S_DBG}:{S_DBG + 1}], s[0:1], 40", "salu", smem=True))
    P(valu("v_lshrrev_b32 v1, 6, v0", [], ["v1"]))
    P(valu(f"v_and_b32 v{V_LANE}, 63, v0", [], [(f"v{V_LANE}", "lane")]))
    P(valu(f"v_readfirstlane_b32 s{S_W}, v1", ["v1"], [f"s{S_W}"]))
    P(salu(f"s_mov_b32 s{S_C}, {f2u(CSCALE):#x}\ns_mov_b32 s{S_NC}, {f2u(-CSCALE):#x}\ns_mov_b32 s{S_T}, {f2u(8.0):#x}", ws=3))
    P(salu(f"s_mul_i32 s{S_W3072}, s{S_W}, 3072\ns_lshl_b32 s{S_W1024}, s{S_W}, 10\ns_mul_i32 s{S_WQO}, s{S_W}, {88 * 384}\n"
           f"s_and_b32 s{S_PAR}, s{S_W}, 1\ns_lshl_b32 s{S_PAR}, s{S_PAR}, 2\ns_mov_b32 s{S_IT}, 0\n"
           f"s_mul_i32 s{S_TMP}, s2, {HB}", ws=7))
    if OPT["codepf"]:
        P(salu(f"s_getpc_b64 s[{S_CODE}:{S_CODE + 1}]\nL_pc:\ns_sub_u32 s{S_CODE}, s{S_CODE}, L_pc-{NAME}\n"
               f"s_subb_u32 s{S_CODE + 1}, s{S_CODE + 1}, 0\ns_mov_b32 s{S_CODE + 2}, L_end-{NAME}\n"
               f"s_mov_b32 s{S_CODE + 3}, 0x20000\n"
               f"s_lshr_b32 s{S_TMP2}, s2, 3\ns_lshl_b32 s{S_TMP2}, s{S_TMP2}, 2\ns_add_u32 s{S_TMP2}, s{S_TMP2}, s{S_W}\n"
               f"s_and_b32 s{S_TMP2}, s{S_TMP2}, 63\ns_lshl_b32 s{S_TMP2}, s{S_TMP2}, 10\n"
               f"s_lshl_b32 m0, s{S_W1024}, 2\ns_add_u32 m0, m0, {STG}", ws=12))
        P(valu(f"v_lshlrev_b32 v1, 4, v{V_LANE}", [], ["v1"]))
        P(Ins(f"buffer_load_dwordx4 v1, s[{S_CODE}:{S_CODE + 3}], s{S_TMP2} offen lds", "store", data=("X", 0)))
    pro += lane_const("voffK", V_VOK, 1, 2)
    P(Ins("s_waitcnt lgkmcnt(0)", "wait"))
    for i, base in enumerate([S_Q, S_K, S_V, S_O]):
        P(salu(f"s_add_u32 s{base}, s{4 + 2 * i}, s{S_TMP}\ns_addc_u32 s{base + 1}, s{5 + 2 * i}, 0\n"
               f"s_mov_b32 s{base + 2}, {HB}\ns_mov_b32 s{base + 3}, 0x20000", ws=4))
    if OPT["stamp"]:
        P(salu(f"s_mov_b32 s{S_DBG + 2}, 0x100000\n"
               f"s_mov_b32 s{S_DBG + 3}, 0x20000\ns_memrealtime s[58:59]", ws=5, stampafter=True, name="start"))
    for slot in range(12):
        pro += flat(dma_Q(slot))
    pro[-1].meta.update(stampafter=True, name="qissued")
    pro += lane_const("voffV", V_VOV, 1, 2)
    pro += q_step(0)
    P(barrier([], "pq0"))
    for t in range(NK0):
        pro += flat(dma_K(t))
    P(salu(f"s_mov_b32 s{S_OP}, s{S_O}\ns_mov_b32 s{S_OP + 1}, s{S_O + 1}\ns_mov_b32 s{S_OP + 2}, 0\n"
           f"s_mov_b32 s{S_OP + 3}, 0x20000", ws=4))
    pro += phase2_consts() + copy_stage_addrs()
    for TT, base in ((0, V_D0), (1, V_D1)):
        for b in range(3):
            for k in range(8):
                P(valu(f"v_mov_b32 v{base + 8 * b + k}, 0", [], [(f"v{base + 8 * b + k}", f"OP(2,{TT},{b}).{k}")]))
    if OPT["stamp"]:
        P(salu(f"s_mov_b32 m0, {STG}\ns_mov_b32 s{S_TMP}, 0x1000000", ws=2, wr=["m0"]))
        P(Ins(f"buffer_load_dword v{V_VOK}, s[{S_O}:{S_O + 3}], s{S_TMP} offen lds", "store", data=("X", 0)))
    pre, body, tail, post = build_body()
    q1 = [Ins("L_q1:", "label", ws=0)]
    q1 += q_step(1)
    q1 += q_step(2)
    q1 += k_addr_setup(V_TMPA, V_FR)
    q1.append(barrier([("K", 0)], "q2"))
    q1 += pre
    step = NWG * HB
    adv = lambda s: f"s_add_u32 s{s}, s{s}, {step}\ns_addc_u32 s{s + 1}, s{s + 1}, 0"
    mid = [salu(f"s_cmp_ge_u32 s{S_IT}, {NHEADS_PER_WG - 1}\ns_cbranch_scc1 L_last", ws=2, name="tail", stampbefore=True)]
    mid.append(barrier([], "relend"))
    mid += post
    mid += evac(1, 2, defer=True) + copy_stage_addrs()
    mid.append(Ins("s_waitcnt lgkmcnt(0)", "wait", lgkm0=True, stampafter=True, name="end"))
    last = [Ins("L_last:\ns_waitcnt lgkmcnt(0)", "wait")] + list(tail)
    if OPT["stamp"]:
        pro = add_stamps(pro)
        rest = add_stamps(q1 + body + mid)
        q1, body, mid = [], rest, [stamp_dump()]
        n = len(STAMPS)
        last.append(Ins(f"s_mov_b32 s{60 + n - 3}, s{S_ST}\ns_mov_b32 s{60 + n - 2}, s{S_ST}\n{STAMPOP} s[{S_ST}:{S_ST + 1}]", "salu", ws=3))
        last.append(stamp_dump())
        print("STAMPS", STAMPS, file=sys.stderr)
        open("stamps.txt", "w").write(" ".join(STAMPS))
    mid.append(salu(f"s_add_u32 s{S_IT}, s{S_IT}, 1\n"
                    f"s_mov_b32 s{S_OP}, s{S_O}\ns_mov_b32 s{S_OP + 1}, s{S_O + 1}\ns_mov_b32 s{S_OP + 2}, {HB}\n"
                    f"{adv(S_V)}\n{adv(S_O)}\ns_branch L_q1", ws=9))
    return pro, q1 + body + mid, last


def insert_lgkm(seq):
    out = []
    pend = []
    nxt = {}
    cur = None
    for x in seq:
        if x.kind == "bar":
            cur = x
            nxt[id(x)] = set()
        elif x.kind == "dma" and cur is not None:
            nxt[id(cur)].add(x.meta["slot"])
    nextm = {}
    nm = None
    for x in reversed(seq):
        if x.kind == "mfma":
            nextm[id(x)] = nm
            nm = x

    def needed(x):
        need = None
        regs = set(r for r, _ in x.rd) | set(r for r, _ in x.wr)
        for k, p in enumerate(pend):
            if p.kind == "dsr" and regs & set(r for r, _ in p.wr):
                need = k
        return need
    for i, x in enumerate(seq):
        need = needed(x)
        if x.kind == "bar":
            for k, p in enumerate(pend):
                if p.kind == "dsr" and set(p.meta.get("slots", [])) & nxt[id(x)]:
                    need = k if need is None else max(need, k)
            pn = x.meta.pop("preneed", None)
            if pn is not None:
                need = pn if need is None else max(need, pn)
            x.meta["lgkm"] = None
            if need is not None:
                x.meta["lgkm"] = min(15, len(pend) - 1 - need)
                pend = pend[len(pend) - x.meta["lgkm"]:] if x.meta["lgkm"] else []
        elif need is not None:
            n = min(15, len(pend) - 1 - need)
            out.append(Ins(f"s_waitcnt lgkmcnt({n})", "wait", lgkm=n))
            pend = pend[len(pend) - n:] if n else []
        if x.kind == "wait" and ("lgkmcnt(0)" in x.txt):
            pend = []
        out.append(x)
        if x.kind in ("dsr", "dsw"):
            pend.append(x)
        if x.kind == "mfma" and nextm[id(x)] is not None:
            need = needed(nextm[id(x)])
            if need is not None:
                if seq[i + 1].kind == "bar":
                    seq[i + 1].meta["preneed"] = need
                else:
                    n = min(15, len(pend) - 1 - need)
                    out.append(Ins(f"s_waitcnt lgkmcnt({n})", "wait", lgkm=n))
                    pend = pend[len(pend) - n:] if n else []
    return out


def resolve_vm(dyn):
    vm = []
    for x in dyn:
        if x.kind in ("dma", "store"):
            vm.append(x.meta["data"])
        elif x.kind in ("bar", "waitvm"):
            n = None
            for d in x.meta["need"]:
                idx = max(i for i, y in enumerate(vm) if y == d)
                k = len(vm) - 1 - idx
                n = k if n is None else min(n, k)
            x.meta.setdefault("vmlist", []).append(n)
    for x in dyn:
        if x.kind in ("bar", "waitvm"):
            l = x.meta["vmlist"]
            x.meta["vm"] = None if l[0] is None else min(63, min(l))


def finalize_waits(seq):
    for x in seq:
        if x.kind in ("bar", "waitvm"):
            w = []
            if x.meta.get("vm") is not None:
                w.append(f"vmcnt({x.meta['vm']})")
            if x.meta.get("lgkm") is not None:
                w.append(f"lgkmcnt({x.meta['lgkm']})")
            t = ("s_waitcnt " + " ".join(w)) if w else ""
            if x.kind == "bar":
                x.txt = (t + "\n" if t else "") + "s_barrier"
                x.ws = 2 if t else 1
            else:
                x.txt = t
            x.txt += f"   ; {x.meta.get('name', '')} need={x.meta['need']} vm={x.meta['vmlist']}"


def hazards(dyn):
    fix = {}
    isv = lambda x: x.kind in ("valu", "trans")
    for i, x in enumerate(dyn):
        if x.kind in ("label",):
            continue
        rd = set(r for r, _ in x.rd)
        wr = set(r for r, _ in x.wr)
        dist = 0
        j = i - 1
        need = 0
        while j >= 0 and dist < 14:
            y = dyn[j]
            ywr = set(r for r, _ in y.wr)
            yrd = set(r for r, _ in y.rd)
            req = 0
            if y.kind == "mfma":
                if x.kind == "mfma":
                    ab = rd - x.meta["cregs"]
                    if ab & ywr:
                        req = 12
                    elif x.meta["cregs"] & ywr and x.meta["cregs"] != ywr:
                        req = 10
                    elif (wr & ywr) and not (x.meta["cregs"] & ywr):
                        req = 10
                elif (rd | wr) & ywr:
                    req = 12
                elif isv(x) and wr & y.meta["cregs"]:
                    req = 7
            elif isv(y):
                if x.kind == "mfma" and rd & ywr:
                    req = 2
                if y.kind == "trans" and x.kind == "valu" and rd & ywr:
                    req = max(req, 1)
                if x.meta.get("permlane") and rd & ywr:
                    req = max(req, 2)
                if "readfirstlane" in x.txt and rd & ywr:
                    req = max(req, 1)
            elif y.kind == "store":
                if wr & yrd:
                    req = 2
            elif y.kind == "salu":
                if x.kind == "dma" and "m0" in ywr:
                    req = 1
            if req > dist:
                need = max(need, req - dist)
            dist += y.ws + fix.get(id(y), 0)
            j -= 1
        if need:
            fix[id(x)] = max(fix.get(id(x), 0), need)
    return fix


def check_tags(dyn):
    st = {}
    errs = 0
    for x in dyn:
        for r, tg in x.rd:
            if tg is not None and st.get(r) != tg:
                print(f"TAG ERROR: {x.txt.splitlines()[-1]} reads {r}: expected {tg} found {st.get(r)} (pos {x.pos})",
                      file=sys.stderr)
                errs += 1
                if errs > 20:
                    sys.exit(1)
        for r, tg in x.wr:
            st[r] = tg
    if errs:
        sys.exit(1)


def check_lds(dyn):
    cur = {}
    reads = {}
    released = {s: True for s in range(12)}
    nvm = 0
    nlds = 0
    done_vm = 0
    done_lds = 0
    for x in dyn:
        if x.kind in ("bar", "waitvm", "wait"):
            vm = x.meta.get("vm")
            if vm is not None:
                done_vm = max(done_vm, nvm - vm)
            lg = x.meta.get("lgkm")
            if x.kind == "wait" and "lgkmcnt(0)" in x.txt:
                lg = 0
            if lg is not None:
                done_lds = max(done_lds, nlds - lg)
            if x.kind == "bar":
                for s, c in cur.items():
                    if len(c["ops"]) == 3 and max(c["ops"]) < done_vm:
                        c["visible"] = True
                for s in range(12):
                    if all(i < done_lds for i in reads.get(s, [])):
                        released[s] = True
        elif x.kind == "dma":
            s = x.meta["slot"]
            c = cur.get(s)
            if c is None or len(c["ops"]) == 3:
                assert released[s], f"DMA into unreleased slot {s}: {x.meta} pos {x.pos}"
                if c is not None:
                    assert c["nread"] == c["exp"], f"slot {s} overwritten after {c['nread']} reads of {c['data']}"
                exp = {"K": 12, "V": 24, "Q": 12}[x.meta["data"][0]]
                cur[s] = c = dict(data=x.meta["data"], ops=[], visible=False, nread=0, exp=exp)
                reads[s] = []
            assert c["data"] == x.meta["data"]
            c["ops"].append(nvm)
            nvm += 1
        elif x.kind == "store":
            nvm += 1
        elif x.kind in ("dsr", "dsw"):
            for s in x.meta.get("slots", []):
                c = cur[s]
                assert c["data"] == x.meta["data"], f"read of {x.meta['data']} finds {c['data']} in slot {s}"
                assert len(c["ops"]) == 3 and max(c["ops"]) < done_vm, f"read before landing {x.meta} pos {x.pos}"
                if not x.meta.get("private"):
                    assert c["visible"], f"read before barrier {x.meta} pos {x.pos}"
                c["nread"] += 1
                reads[s].append(nlds)
                released[s] = False
            nlds += 1


def rare_code():
    L = []
    A = L.append
    if OPT["nomax"]:
        return L
    for t in range(1, 12):
        for b in range(3):
            tm, nmc, l = f"v{V_TM + b}", f"v{V_NMC + b}", f"v{V_L + b}"
            s = Sreg(t, b)
            A(f"L_rare{t}_{b}:")
            A("s_waitcnt lgkmcnt(0)")
            A("s_nop 15")
            if t <= 8:
                A(f"v_mov_b32 v{V_SAVE}, v0")
                A(f"v_mov_b32 v{V_SAVE + 1}, v1")
            else:
                A(f"s_lshl_b32 s{S_TMP}, s{S_W1024}, 2")
                A(f"v_lshlrev_b32 v{V_LANE}, 3, v{V_LANE}")
                A(f"v_add_u32 v{V_LANE}, s{S_TMP}, v{V_LANE}")
                A(f"v_add_u32 v{V_LANE}, {STG}, v{V_LANE}")
                A(f"ds_write_b64 v{V_LANE}, v[0:1]")
                A("s_waitcnt lgkmcnt(0)")
            A(f"v_mov_b32 v0, {tm}")
            A("s_nop 1")
            A(f"v_permlane32_swap_b32 {tm}, v0")
            A("s_nop 1")
            A(f"v_max3_f32 {tm}, {tm}, v0, 0")
            A(f"v_sub_f32 {nmc}, {nmc}, {tm}")
            for r in range(16):
                A(f"v_sub_f32 v{s + r}, v{s + r}, {tm}")
            A(f"v_sub_f32 {tm}, 0, {tm}")
            A(f"v_exp_f32 {tm}, {tm}")
            A("s_nop 0")
            A(f"v_mul_f32 {l}, {l}, {tm}")
            if t == 11:
                X = Oset(0, 0)
                for r in range(16):
                    a = 48 * X + 16 * b + r
                    A(f"v_accvgpr_read_b32 v0, a{a}")
                    A(f"v_mul_f32 v0, v0, {tm}")
                    A(f"v_accvgpr_write_b32 a{a}, v0")
            A(f"s_call_b64 s[{S_RET}:{S_RET + 1}], L_resc{t - 1}_{b}")
            if t <= 8:
                A(f"v_mov_b32 v0, v{V_SAVE}")
                A(f"v_mov_b32 v1, v{V_SAVE + 1}")
            else:
                A(f"ds_read_b64 v[0:1], v{V_LANE}")
                A(f"v_mbcnt_lo_u32_b32 v{V_LANE}, -1, 0")
                A(f"v_mbcnt_hi_u32_b32 v{V_LANE}, -1, v{V_LANE}")
                A("s_waitcnt lgkmcnt(0)")
            A("s_nop 1")
            A(f"s_branch L_ret{t}_{b}")
    for b in range(3):
        tm, nmc = f"v{V_TM + b}", f"v{V_NMC + b}"
        for t in range(10, -1, -1):
            A(f"L_resc{t}_{b}:")
            pf, pr = Ploc(t, b)
            for k in range(8):
                if pf == "a":
                    A(f"v_accvgpr_read_b32 v1, a{pr + k}")
                    p = "v1"
                else:
                    p = f"v{pr + k}"
                A(f"v_lshlrev_b32 v0, 16, {p}")
                A(f"v_and_b32 {p}, 0xffff0000, {p}")
                A(f"v_mul_f32 v0, v0, {tm}")
                A(f"v_mul_f32 {p}, {p}, {tm}")
                A(f"v_cvt_pk_bf16_f32 {p}, v0, {p}")
                if pf == "a":
                    A(f"v_accvgpr_write_b32 a{pr + k}, v1")
        A(f"s_setpc_b64 s[{S_RET}:{S_RET + 1}]")
    return L


def main():
    pro, loop, last = build()
    pro = insert_lgkm(pro + [Ins("s_waitcnt lgkmcnt(0)", "wait")])
    loop = insert_lgkm(loop)
    last = insert_lgkm(last)
    i0 = [i for i, x in enumerate(loop) if "s_cbranch_scc1 L_last" in x.txt][0]
    dyn = pro + loop + loop[:i0 + 1] + last
    resolve_vm(dyn)
    finalize_waits(pro + loop + last)
    check_tags(dyn)
    check_lds(dyn)
    fix = hazards(dyn)
    out = []
    hdr = open("standalone__gqa_softmax__near_ridge.s.ref").read().split("; Override")[0]
    out.append(hdr.rstrip())
    out.append(f"; @launch grid=({NWG},1,1) block=(256,1,1) lds=163840")
    out.append('.amdgcn_target "amdgcn-amd-amdhsa--gfx950"')
    out.append(f".text\n.globl {NAME}\n.p2align 8\n.type {NAME},@function\n{NAME}:")
    nn = 0
    for x in pro + loop + last:
        k = fix.get(id(x), 0)
        if k:
            out.append(f"s_nop {k - 1}")
            nn += 1
        if x.txt.strip():
            out.append(x.txt)
    out.append("L_end:\ns_endpgm")
    out += rare_code()
    out.append(f'''.section .rodata,"a"
.p2align 6
.amdhsa_kernel {NAME}
  .amdhsa_next_free_vgpr 512
  .amdhsa_next_free_sgpr 102
  .amdhsa_accum_offset 256
  .amdhsa_group_segment_fixed_size 0
  .amdhsa_kernarg_size 48
  .amdhsa_user_sgpr_count 2
  .amdhsa_user_sgpr_kernarg_segment_ptr 1
  .amdhsa_system_sgpr_workgroup_id_x 1
.end_amdhsa_kernel''')
    print("\n".join(out))
    print(f"nops inserted: {nn}; loop instrs {len(loop)}", file=sys.stderr)


main()
```

```python
import sys, math, struct

NAME = "standalone__gqa_softmax__near_ridge_kernel"
HB = 147456
SLOT = 12288
STG = 147456
NHEADS_PER_WG = 2
NWG = 256

OPT = dict(delta=11, la=8.5, pace1=7.0, dbgtime=0, nk0=2, dst0=20.0, dstpace=16.0, pace3=6.0, smstart=1.2, nomax=0, pace2=9.0, ldnt="nt", stnt="nt", stamp=0, codepf=1)
for a in sys.argv[1:]:
    if "=" in a:
        k, v = a.split("=")
        OPT[k] = type(OPT[k])(v) if k in OPT else v
DELTA = OPT["delta"]
LA = OPT["la"]
NK0 = OPT["nk0"]
SMSTART = OPT["smstart"]
LDNT = OPT["ldnt"].replace("+", " ").replace("-", "")
STNT = OPT["stnt"].replace("+", " ").replace("-", "")


def f2u(x):
    return struct.unpack("<I", struct.pack("<f", x))[0]


CSCALE = (192 ** -0.5) * math.log2(math.e)

COST = dict(mfma=8, valu=4, trans=8, salu=4, dsr=4, dsw=8, dma=16, store=16, bar=4, label=0, branch=4, nop=4,
            wait=4, waitvm=4)


class Ins:
    _seq = 0

    def __init__(self, txt, kind, rd=(), wr=(), pos=None, ws=1, **meta):
        self.txt = txt
        self.kind = kind
        self.rd = [(r, None) if isinstance(r, str) else r for r in rd]
        self.wr = [(r, None) if isinstance(r, str) else r for r in wr]
        self.pos = pos
        self.ws = ws
        self.meta = meta
        self.seq = Ins._seq
        Ins._seq += 1

    @property
    def cost(self):
        return COST[self.kind] * self.ws if self.kind in ("salu", "nop") else COST[self.kind]


def R(f, n, cnt=1):
    return [f"{f}{n + i}" for i in range(cnt)]


def rs(f, n, cnt):
    return f"{f}{n}" if cnt == 1 else f"{f}[{n}:{n + cnt - 1}]"


def tagged(regs, tag):
    return [(r, f"{tag}.{i}") for i, r in enumerate(regs)]


S_W = 3
S_Q, S_K, S_V, S_O = 16, 20, 24, 28
S_C, S_NC, S_T = 32, 33, 34
S_W3072, S_W1024, S_WQO = 35, 36, 37
S_IT = 38
S_SOFF = 39
S_RET = 40
S_CMP = 42
S_TMP = 48
S_TMP2 = 49
S_PAR = 50
S_DBG = 52
S_ST = 56
S_SOFF2 = 51
V_FR = 0
V_KA = 16
V_VOK, V_VOV = 20, 21
V_NMC = 22
V_L = 25
V_TM = 28
V_LANE = 31
BIG = 32
SB0, SB1 = 160, 208
F0, F1 = 184, 232
V_VA0, V_VA1, V_STR = 16, 17, 18
V_ET = F0
V_PK = F0 + 4
V_RB = F0 + 12
V_STW = F0 + 20
V_PARK = F1
V_D0 = BIG + 48
V_D1 = BIG + 72
V_DRB = BIG + 96
V_DSTW = BIG + 104
V_DSTR = BIG + 108
V_SAVE = BIG + 120
S_OP = 12
S_CODE = 44
V_TMPA = 19
V_QA = [28, 29, 30, 22]


def Sreg(t, b):
    if t == 0:
        return BIG + 16 * b
    return (SB1 if t % 2 else SB0) + 16 * b


def Ploc(t, b):
    n = 3 * t + b
    if n < 14:
        return ("a", 144 + 8 * n)
    if t <= 9:
        return ("v", BIG + 8 * (n - 14))
    return ("v", (SB0 if t == 10 else SB1) + 8 * b)


def Qreg(b, ks):
    return 48 * (ks // 4) + 16 * b + 4 * (ks % 4)


def Oset(T, sg):
    return (2 * sg + T) % 3


def valu(txt, rd, wr, **m):
    return Ins(txt, "valu", rd, wr, **m)


def salu(txt, rd=(), wr=(), **m):
    return Ins(txt, "salu", rd, wr, **m)


def spread(lst, a, b):
    tot = sum(i.cost for i in lst)
    c = 0
    for i in lst:
        i.pos = a + (b - a) * (c / tot if tot else 0)
        c += i.cost
    return lst


def lane_const(kind, dst, t1, t2):
    L = f"v{V_LANE}"
    d, x, y = f"v{dst}", f"v{t1}", f"v{t2}"
    o = []

    def e(txt, rd, wr, last=False):
        o.append(valu(txt, rd, [(wr, f"const:{kind}" if last else None)]))
    LR = (L, "lane")
    if kind == "baseK":
        e(f"v_bfe_u32 {x}, {L}, 1, 3", [LR], x)
        e(f"v_lshrrev_b32 {y}, 5, {L}", [LR], y)
        e(f"v_xor_b32 {x}, {x}, {y}", [x, y], x)
        e(f"v_lshlrev_b32 {d}, 4, {x}", [x], d)
        e(f"v_and_b32 {x}, 7, {L}", [LR], x)
        e(f"v_lshl_add_u32 {d}, {x}, 7, {d}", [x, d], d)
        e(f"v_bfe_u32 {x}, {L}, 3, 2", [LR], x)
        e(f"v_mul_u32_u24 {x}, 3072, {x}", [x], x)
        e(f"v_add_u32 {d}, {d}, {x}", [d, x], d, True)
    elif kind == "baseQ":
        e(f"v_bfe_u32 {x}, {L}, 1, 2", [LR], x)
        e(f"v_or_b32 {x}, s{S_PAR}, {x}", [x], x)
        e(f"v_lshrrev_b32 {y}, 5, {L}", [LR], y)
        e(f"v_xor_b32 {x}, {x}, {y}", [x, y], x)
        e(f"v_lshlrev_b32 {d}, 4, {x}", [x], d)
        e(f"v_and_b32 {x}, 7, {L}", [LR], x)
        e(f"v_lshl_add_u32 {d}, {x}, 7, {d}", [x, d], d)
        e(f"v_bfe_u32 {x}, {L}, 3, 2", [LR], x)
        e(f"v_lshl_add_u32 {d}, {x}, 12, {d}", [x, d], d)
        e(f"v_add_u32 {d}, s{S_W1024}, {d}", [d], d, True)
    elif kind == "voffK":
        e(f"v_lshrrev_b32 {x}, 4, {L}", [LR], x)
        e(f"v_or_b32 {x}, s{S_PAR}, {x}", [x], x)
        e(f"v_and_b32 {y}, 7, {L}", [LR], y)
        e(f"v_xor_b32 {x}, {x}, {y}", [x, y], x)
        e(f"v_lshlrev_b32 {d}, 4, {x}", [x], d)
        e(f"v_lshrrev_b32 {x}, 3, {L}", [LR], x)
        e(f"v_mul_u32_u24 {x}, 384, {x}", [x], x)
        e(f"v_add3_u32 {d}, {d}, {x}, s{S_W3072}", [d, x], d, True)
    elif kind == "voffV":
        e(f"v_bfe_u32 {x}, {L}, 2, 3", [LR], x)
        e(f"v_mul_u32_u24 {d}, 384, {x}", [x], d)
        e(f"v_lshrrev_b32 {x}, 5, {L}", [LR], x)
        e(f"v_lshl_add_u32 {d}, {x}, 6, {d}", [x, d], d)
        e(f"v_and_b32 {x}, 3, {L}", [LR], x)
        e(f"v_lshl_add_u32 {d}, {x}, 4, {d}", [x, d], d)
        e(f"v_mov_b32 {x}, s{S_W3072}", [], x)
        e(f"v_mad_u32_u24 {d}, {x}, 3, {d}", [x, d], d, True)
    elif kind == "baseV":
        e(f"v_lshrrev_b32 {x}, 5, {L}", [LR], x)
        e(f"v_lshlrev_b32 {d}, 8, {x}", [x], d)
        e(f"v_bfe_u32 {x}, {L}, 2, 2", [LR], x)
        e(f"v_lshl_add_u32 {d}, {x}, 6, {d}", [x, d], d)
        e(f"v_and_b32 {x}, 1, {L}", [LR], x)
        e(f"v_lshl_add_u32 {d}, {x}, 5, {d}", [x, d], d)
        e(f"v_and_b32 {x}, 16, {L}", [LR], x)
        e(f"v_add_u32 {d}, {d}, {x}", [x, d], d)
        e(f"v_bfe_u32 {x}, {L}, 1, 1", [LR], x)
        e(f"v_lshl_add_u32 {d}, {x}, 3, {d}", [x, d], d, True)
    elif kind == "stW":
        e(f"v_lshrrev_b32 {x}, 5, {L}", [LR], x)
        e(f"v_lshlrev_b32 {x}, 1, {x}", [x], x)
        e(f"v_and_b32 {y}, 7, {L}", [LR], y)
        e(f"v_xor_b32 {x}, {x}, {y}", [x, y], x)
        e(f"v_lshlrev_b32 {d}, 4, {x}", [x], d)
        e(f"v_and_b32 {x}, 31, {L}", [LR], x)
        e(f"v_lshl_add_u32 {d}, {x}, 7, {d}", [x, d], d)
        e(f"v_mov_b32 {x}, s{S_W1024}", [], x)
        e(f"v_lshl_add_u32 {d}, {x}, 2, {d}", [x, d], d)
        e(f"v_add_u32 {d}, {STG}, {d}", [d], d, True)
    elif kind == "stR":
        e(f"v_lshrrev_b32 {x}, 4, {L}", [LR], x)
        e(f"v_or_b32 {x}, s{S_PAR}, {x}", [x], x)
        e(f"v_and_b32 {y}, 7, {L}", [LR], y)
        e(f"v_xor_b32 {x}, {x}, {y}", [x, y], x)
        e(f"v_lshrrev_b32 {y}, 3, {L}", [LR], y)
        e(f"v_xor_b32 {x}, {x}, {y}", [x, y], x)
        e(f"v_lshlrev_b32 {d}, 4, {x}", [x], d)
        e(f"v_lshl_add_u32 {d}, {y}, 7, {d}", [y, d], d)
        e(f"v_mov_b32 {x}, s{S_W1024}", [], x)
        e(f"v_lshl_add_u32 {d}, {x}, 2, {d}", [x, d], d)
        e(f"v_add_u32 {d}, {STG}, {d}", [d], d, True)
    else:
        raise ValueError(kind)
    return o


def dma(data, slot, m0base, m0const, voff, vtag, srd, soff_txt, inst_off):
    off = f" offset:{inst_off}" if inst_off else ""
    tg = f"dma{data}{m0const}"
    o = [salu(f"s_add_u32 m0, s{m0base}, {m0const - inst_off}", wr=[("m0", tg), "scc"])]
    if soff_txt:
        o.append(salu(soff_txt, wr=[(f"s{S_SOFF}", soff_txt), "scc"]))
        dma.last = soff_txt
    o.append(Ins(f"buffer_load_dwordx4 v{voff}, s[{srd}:{srd + 3}], s{S_SOFF} offen{off} {LDNT} lds", "dma",
                 rd=[(f"v{voff}", vtag), ("m0", tg), (f"s{S_SOFF}", dma.last)], data=data, slot=slot))
    return o


def dma_K(t):
    return [dma(("K", t), t, S_W3072, t * SLOT + g * 1024, V_VOK, "const:voffK", S_K,
                f"s_mov_b32 s{S_SOFF}, {t * SLOT}" if g == 0 else None, g * 128) for g in range(3)]


def dma_V(j):
    sg, i = j // 4, j % 4
    return [dma(("V", j), j, S_W3072, j * SLOT + n * 1024, V_VOV, "const:voffV", S_V,
                f"s_mov_b32 s{S_SOFF}, {(96 * i + 8 * n) * 384 + sg * 128}", 0) for n in range(3)]


def dma_Q(slot):
    g = slot // 4
    o = []
    for k in range(3):
        n = (slot % 4) * 3 + k
        o.append(dma(("Q", g), slot, S_W1024, g * 49152 + n * 4096, V_VOK, "const:voffK", S_Q,
                     f"s_add_u32 s{S_SOFF}, s{S_WQO}, {n * 8 * 384 + g * 128}", 0))
    return o


def barrier(need, name=""):
    return Ins("s_barrier", "bar", need=need, name=name)


def waitvm(need):
    return Ins("", "waitvm", need=need)


STAMPS = []
STAMPOP = "s_memrealtime" if OPT["stamp"] == 2 else "s_memtime"


def stamp(name):
    n = len(STAMPS)
    STAMPS.append(name)
    assert n < 40
    t = f"s_mov_b32 s{60 + n - 1}, s{S_ST}\n" if n else ""
    return Ins(t + f"{STAMPOP} s[{S_ST}:{S_ST + 1}]", "salu", smem=True, ws=2)


def add_stamps(seq):
    out = []
    for x in seq:
        if x.kind == "bar" or x.meta.get("stampbefore"):
            out.append(stamp("pre-" + x.meta.get("name", "x")) if x.meta.get("stampbefore") else None)
        out.append(x)
        if x.kind == "bar" or x.kind == "label" or x.meta.get("stampafter"):
            out.append(stamp(x.meta.get("name", x.txt)))
    return [x for x in out if x is not None]


def stamp_dump():
    n = len(STAMPS)
    t = [f"s_waitcnt lgkmcnt(0)", f"s_mov_b32 s{60 + n - 1}, s{S_ST}", f"s_memrealtime s[{S_ST}:{S_ST + 1}]"]
    for i in range(n):
        t.append(f"v_writelane_b32 v{F0}, s{60 + i}, {i}")
    t.append("s_waitcnt lgkmcnt(0)")
    t.append(f"v_writelane_b32 v{F0}, s{S_ST}, 62")
    t.append(f"v_writelane_b32 v{F0}, s58, 63")
    t.append(f"s_lshl_b32 s{S_TMP}, s2, 2\ns_add_u32 s{S_TMP}, s{S_TMP}, s{S_W}\ns_lshl_b32 s{S_TMP}, s{S_TMP}, 1\n"
             f"s_add_u32 s{S_TMP}, s{S_TMP}, s{S_IT}\ns_lshl_b32 s{S_TMP}, s{S_TMP}, 8")
    t.append(f"v_lshlrev_b32 v{F0 + 1}, 2, v{V_LANE}")
    t.append(f"buffer_store_dword v{F0}, v{F0 + 1}, s[{S_DBG}:{S_DBG + 3}], s{S_TMP} offen")
    return Ins("\n".join(t), "store", ws=20, data=("D", 0))


def q_step(g):
    o = lane_const("baseQ", V_QA[0], V_QA[1], V_QA[2])
    if g:
        o.append(valu(f"v_add_u32 v{V_QA[0]}, {g * 49152}, v{V_QA[0]}", [(f"v{V_QA[0]}", "const:baseQ")],
                      [(f"v{V_QA[0]}", "const:baseQ")]))
    for k in range(1, 4):
        o.append(valu(f"v_xor_b32 v{V_QA[k]}, {32 * k}, v{V_QA[0]}", [(f"v{V_QA[0]}", "const:baseQ")],
                      [(f"v{V_QA[k]}", f"qa{k}")]))
    o.append(waitvm([("Q", g)]))
    for k in range(4):
        for b in range(3):
            a = Qreg(b, 4 * g + k)
            o.append(Ins(f"ds_read_b128 a[{a}:{a + 3}], v{V_QA[k]} offset:{b * 16384}", "dsr",
                         rd=[(f"v{V_QA[k]}", f"qa{k}" if k else "const:baseQ")],
                         wr=tagged(R("a", a, 4), f"Q({b},{4 * g + k})"),
                         data=("Q", g), slots=[4 * g + s for s in range(4)], private=True))
    return o


def k_addr_setup(t1, t2):
    o = lane_const("baseK", V_KA, t1, t2)
    for k in range(1, 4):
        o.append(valu(f"v_xor_b32 v{V_KA + k}, {32 * k}, v{V_KA}", [(f"v{V_KA}", "const:baseK")],
                      [(f"v{V_KA + k}", "const:baseK")]))
    return o


def merge(x, y, yfrac=0.85):
    if not x:
        return list(y)
    if not y:
        return list(x)
    tx = sum(i.cost for i in x)
    ty = sum(i.cost for i in y)
    items = []
    c = 0
    for n, i in enumerate(x):
        items.append((c / tx, 0, n, i))
        c += i.cost
    c = 0
    for n, i in enumerate(y):
        items.append((yfrac * c / ty, 1, n, i))
        c += i.cost
    items.sort(key=lambda z: z[:3])
    return [z[3] for z in items]


def sm_unit(t, b):
    s = Sreg(t, b)
    tm, nmc, l = f"v{V_TM + b}", f"v{V_NMC + b}", f"v{V_L + b}"
    St = lambda r: (f"v{s + r}", f"S({t},{b})@11.{r}")
    Xt = lambda r: (f"v{s + r}", f"X({t},{b}).{r}")
    Et = lambda r: (f"v{s + r}", f"E({t},{b}).{r}")

    def fma(r):
        return valu(f"v_fma_f32 v{s + r}, v{s + r}, s{S_C}, {nmc}", [St(r), (nmc, f"nmc{b}")], [Xt(r)])

    def maxchain(src):
        o = [valu(f"v_max3_f32 {tm}, v{s}, v{s + 1}, v{s + 2}", [src(0), src(1), src(2)], [(tm, f"tm{b}")])]
        for r in range(3, 15, 2):
            o.append(valu(f"v_max3_f32 {tm}, {tm}, v{s + r}, v{s + r + 1}",
                          [(tm, f"tm{b}"), src(r), src(r + 1)], [(tm, f"tm{b}")]))
        o.append(valu(f"v_max_f32 {tm}, {tm}, v{s + 15}", [(tm, f"tm{b}"), src(15)], [(tm, f"tm{b}")]))
        return o
    A = []
    f = [fma(r) for r in range(16)]
    br = None
    if t == 0:
        A += maxchain(St)
        A.append(valu(f"v_mov_b32 {nmc}, {tm}", [(tm, f"tm{b}")], [(nmc, "tmp")]))
        A.append(valu(f"v_permlane32_swap_b32 {tm}, {nmc}", [(tm, f"tm{b}"), (nmc, "tmp")],
                      [(tm, "tmA"), (nmc, "tmB")], permlane=True))
        A.append(valu(f"v_max_f32 {tm}, {tm}, {nmc}", [(tm, "tmA"), (nmc, "tmB")], [(tm, "tmC")]))
        A.append(valu(f"v_mul_f32 {nmc}, s{S_NC}, {tm}", [(tm, "tmC")], [(nmc, f"nmc{b}")]))
        A += f
    elif OPT["nomax"]:
        A += f
    else:
        mc = maxchain(Xt)
        A += f[0:4] + [mc[0]]
        k = 4
        for i in range(1, 8):
            A += f[k:k + 2]
            k += 2
            A.append(mc[i])
        A.append(valu(f"v_cmp_lt_f32 vcc, s{S_T}, {tm}", [(tm, f"tm{b}")], [("vcc", f"chk{t},{b}")]))
        br = Ins(f"s_cbranch_vccnz L_rare{t}_{b}\nL_ret{t}_{b}:", "branch", rd=[("vcc", f"chk{t},{b}")], check=(t, b))
        A.append(br)
    pf, pr = Ploc(t, b)
    ex = [Ins(f"v_exp_f32 v{s + r}, v{s + r}", "trans", [Xt(r)], [Et(r)]) for r in range(16)]
    if br is not None:
        ex[0].meta["after"] = [br]

    def tail(k):
        o = []
        r0, r1 = 2 * k, 2 * k + 1
        if t == 0 and k == 0:
            o.append(valu(f"v_add_f32 {l}, v{s + r0}, v{s + r1}", [Et(r0), Et(r1)], [(l, f"l{b}")]))
        else:
            o.append(valu(f"v_add_f32 {l}, {l}, v{s + r0}", [(l, f"l{b}"), Et(r0)], [(l, f"l{b}")]))
            o.append(valu(f"v_add_f32 {l}, {l}, v{s + r1}", [(l, f"l{b}"), Et(r1)], [(l, f"l{b}")]))
        if pf == "v":
            o.append(valu(f"v_cvt_pk_bf16_f32 v{pr + k}, v{s + r0}, v{s + r1}", [Et(r0), Et(r1)],
                          [(f"v{pr + k}", f"P({t},{b}).{k}")]))
        else:
            o.append(valu(f"v_cvt_pk_bf16_f32 v{s + r0}, v{s + r0}, v{s + r1}", [Et(r0), Et(r1)],
                          [(f"v{s + r0}", "ptmp")]))
            o.append(valu(f"v_accvgpr_write_b32 a{pr + k}, v{s + r0}", [(f"v{s + r0}", "ptmp")],
                          [(f"a{pr + k}", f"P({t},{b}).{k}")]))
        return o
    Bp = []
    for k in range(8):
        tl = tail(k - 1) if k else []
        Bp += [ex[2 * k]] + tl[:2] + [ex[2 * k + 1]] + tl[2:]
    Bp += tail(7)
    return A, Bp


def softmax(t):
    u = [sm_unit(t, b) for b in range(3)]
    o = list(u[0][0])
    a1 = u[1][0]
    o += a1[:5]
    o += merge(u[0][1], a1[5:])
    o += merge(u[1][1], u[2][0])
    o += u[2][1]
    return o


def l_final():
    o = []
    for b in range(3):
        l, x = f"v{V_L + b}", f"v{V_NMC + b}"
        o.append(valu(f"v_mov_b32 {x}, {l}", [(l, f"l{b}")], [(x, "tmp")]))
    for b in range(3):
        l, x = f"v{V_L + b}", f"v{V_NMC + b}"
        o.append(valu(f"v_permlane32_swap_b32 {l}, {x}", [(l, f"l{b}"), (x, "tmp")], [(l, "lA"), (x, "lB")],
                      permlane=True))
    for b in range(3):
        l, x = f"v{V_L + b}", f"v{V_NMC + b}"
        o.append(valu(f"v_add_f32 {l}, {l}, {x}", [(l, "lA"), (x, "lB")], [(l, "lC")]))
    for b in range(3):
        l = f"v{V_L + b}"
        o.append(Ins(f"v_rcp_f32 {l}, {l}", "trans", [(l, "lC")], [(l, f"inv{b}")]))
    return o


def stage_store(sg, b, src0, src1, stw, strd, rbase, srd, tagw, tagr):
    wr = []
    for TT in range(2):
        for e in range(2):
            src = (src0 if TT == 0 else src1) + 4 * e
            tg = f"OP({sg},{TT},{b})"
            aw = stw + 2 * TT + e
            wr.append(Ins(f"ds_write_b128 v{aw}, v[{src}:{src + 3}]", "dsw",
                          rd=[(f"v{aw}", f"{tagw}{2 * TT + e}")] + [(f"v{src + i}", f"{tg}.{4 * e + i}") for i in range(4)]))
    rds, sts = [], []
    for i in range(4):
        rb = rbase + 4 * (i % 2)
        rds.append(Ins(f"ds_read_b128 v[{rb}:{rb + 3}], v{strd} offset:{i * 1024}", "dsr",
                       rd=[(f"v{strd}", tagr)], wr=tagged(R("v", rb, 4), f"rb{i}")))
        so = f"so{sg},{b},{i}"
        sts.append([salu(f"s_add_u32 s{S_SOFF2}, s{S_WQO}, {(32 * b + 8 * i) * 384 + sg * 128}",
                         wr=[(f"s{S_SOFF2}", so), "scc"]),
                    Ins(f"buffer_store_dwordx4 v[{rb}:{rb + 3}], v{V_VOK}, s[{srd}:{srd + 3}], s{S_SOFF2} offen {STNT}",
                        "store", rd=[(f"v{V_VOK}", "const:voffK"), (f"s{S_SOFF2}", so)] + tagged(R("v", rb, 4), f"rb{i}"),
                        data=("O", sg))])
    return wr, [rds[0], rds[1]] + sts[0] + [rds[2]] + sts[1] + [rds[3]] + sts[2] + sts[3]


def evac(T, sg, defer=False):
    X = Oset(T, sg)
    o = []
    park = V_D0 if sg == 2 else V_PARK
    for b in range(3):
        a = 48 * X + 16 * b
        inv = (f"v{V_L + b}", f"inv{b}")
        dst = park + 8 * b if T == 0 else (V_D1 + 8 * b if defer else V_PK)
        dtag = f"OP({sg},{T},{b})"

        def rd(k):
            t0 = V_ET + 2 * (k % 2)
            return [valu(f"v_accvgpr_read_b32 v{t0 + e}, a{a + 2 * k + e}",
                         [(f"a{a + 2 * k + e}", f"O({sg},{T},{b})@23.{2 * k + e}")], [(f"v{t0 + e}", f"et{k}.{e}")])
                    for e in range(2)]

        def fin(k):
            t0 = V_ET + 2 * (k % 2)
            r = [valu(f"v_mul_f32 v{t0 + e}, v{t0 + e}, {inv[0]}", [(f"v{t0 + e}", f"et{k}.{e}"), inv],
                      [(f"v{t0 + e}", f"em{k}.{e}")]) for e in range(2)]
            r.append(valu(f"v_cvt_pk_bf16_f32 v{dst + k}, v{t0}, v{t0 + 1}",
                          [(f"v{t0}", f"em{k}.0"), (f"v{t0 + 1}", f"em{k}.1")], [(f"v{dst + k}", f"{dtag}.{k}")]))
            return r
        o += rd(0)
        for k in range(8):
            if k < 7:
                o += rd(k + 1)
            o += fin(k)
        if T == 1 and not defer:
            wr, rest = stage_store(sg, b, park + 8 * b, V_PK, V_STW, V_STR, V_RB, S_O, "stw", "const:stR")
            o += wr
            o.append(("deferred", rest))
    out = []
    pend = []
    cnt = 0
    for x in o:
        if isinstance(x, tuple):
            out += pend
            pend = list(x[1])
            out += pend[:2]
            pend = pend[2:]
            cnt = 0
            continue
        if x.kind == "dsw" and pend:
            out += pend
            pend = []
        out.append(x)
        cnt += 1
        if pend and cnt % 4 == 0:
            out.append(pend.pop(0))
    out += pend
    return out


def deferred_stores():
    o = []
    for b in range(3):
        wr, rest = stage_store(2, b, V_D0 + 8 * b, V_D1 + 8 * b, V_DSTW, V_DSTR, V_DRB, S_OP, "dstw", "dstr")
        o += wr + rest
    return o


def copy_stage_addrs():
    o = [valu(f"v_mov_b32 v{V_DSTW + k}, v{V_STW + k}", [(f"v{V_STW + k}", f"stw{k}")], [(f"v{V_DSTW + k}", f"dstw{k}")])
         for k in range(4)]
    o.append(valu(f"v_mov_b32 v{V_DSTR}, v{V_STR}", [(f"v{V_STR}", "const:stR")], [(f"v{V_DSTR}", "dstr")]))
    return o


def phase2_consts():
    o = lane_const("stW", V_STW, V_ET, V_ET + 1)
    o[-1].wr = [(f"v{V_STW}", "stw0")]
    for k in range(1, 4):
        x = (16 if k & 1 else 0) + (64 if k & 2 else 0)
        o.append(valu(f"v_xor_b32 v{V_STW + k}, {x}, v{V_STW}", [(f"v{V_STW}", "stw0")], [(f"v{V_STW + k}", f"stw{k}")]))
    o += lane_const("stR", V_STR, V_ET, V_ET + 1)
    return o


def build_body():
    ins = []
    frags = []
    spine = 0
    for t in range(12):
        for ks in range(12):
            n = len(frags)
            frags.append(("K", t, ks))
            fb = V_FR + 4 * (n % 4)
            for b in range(3):
                s = Sreg(t, b)
                q = Qreg(b, ks)
                c = "0" if ks == 0 else f"v[{s}:{s + 15}]"
                rd = tagged(R("v", fb, 4), f"K({t},{ks})") + tagged(R("a", q, 4), f"Q({b},{ks})")
                if ks:
                    rd += tagged(R("v", s, 16), f"S({t},{b})@{ks - 1}")
                ins.append(Ins(f"v_mfma_f32_32x32x16_bf16 v[{s}:{s + 15}], v[{fb}:{fb + 3}], a[{q}:{q + 3}], {c}",
                               "mfma", rd, tagged(R("v", s, 16), f"S({t},{b})@{ks}"), pos=spine,
                               cregs=set(R("v", s, 16)) if ks else set()))
                spine += 1
    rpos = {}
    for rho in range(72 + DELTA):
        rpos[rho] = spine
        for T in range(2):
            n1 = rho - (DELTA if T else 0)
            if not (0 <= n1 < 72):
                continue
            sg, s = n1 // 24, n1 % 24
            n = len(frags)
            frags.append(("V", T, sg, s))
            fb = V_FR + 4 * (n % 4)
            X = Oset(T, sg)
            for b in range(3):
                a = 48 * X + 16 * b
                pf, pr = Ploc(s // 2, b)
                pr += 4 * (s % 2)
                c = "0" if s == 0 else f"a[{a}:{a + 15}]"
                rd = tagged(R("v", fb, 4), f"V({T},{sg},{s})") + \
                    [(f"{pf}{pr + i}", f"P({s // 2},{b}).{4 * (s % 2) + i}") for i in range(4)]
                if s:
                    rd += tagged(R("a", a, 16), f"O({sg},{T},{b})@{s - 1}")
                ins.append(Ins(f"v_mfma_f32_32x32x16_bf16 a[{a}:{a + 15}], v[{fb}:{fb + 3}], {pf}[{pr}:{pr + 3}], {c}",
                               "mfma", rd, tagged(R("a", a, 16), f"O({sg},{T},{b})@{s}"), pos=spine,
                               cregs=set(R("a", a, 16)) if s else set()))
                spine += 1
    rpos[72 + DELTA] = spine
    END = spine
    spine_ins = ins
    streams = []
    fs = []
    pre = []
    first_read, last_read = {}, {}
    bars = []
    vwin = [0, 0]
    aux = []
    for n, fr in enumerate(frags):
        fb = V_FR + 4 * (n % 4)
        p = 3 * n - LA
        if fr[0] == "K":
            _, t, ks = fr
            g, k4 = ks // 4, ks % 4
            if t == 6 and ks < 4:
                aux.append(valu(f"v_add_u32 v{V_KA + k4}, {6 * SLOT}, v{V_KA + k4}",
                                [(f"v{V_KA + k4}", "const:baseK")], [(f"v{V_KA + k4}", "baseK1")], pos=p - 1.5))
            off = (t % 6) * SLOT + g * 1024
            lst = [Ins(f"ds_read_b128 v[{fb}:{fb + 3}], v{V_KA + k4} offset:{off}", "dsr",
                       rd=[(f"v{V_KA + k4}", "const:baseK" if t < 6 else "baseK1")],
                       wr=tagged(R("v", fb, 4), f"K({t},{ks})"), pos=p, data=("K", t), slots=[t])]
            d = ("K", t)
        else:
            _, T, sg, s = fr
            j = 4 * sg + s // 6
            va = V_VA1 if T else V_VA0
            w = j // 5
            if w != vwin[T]:
                aux.append(valu(f"v_add_u32 v{va}, {5 * SLOT}, v{va}", [(f"v{va}", f"va{T}.{vwin[T]}")],
                                [(f"v{va}", f"va{T}.{w}")], pos=p - 1.4))
                vwin[T] = w
            lst = []
            tg = tagged(R("v", fb, 4), f"V({T},{sg},{s})")
            for jj in range(2):
                off = (j % 5) * SLOT + (2 * (s % 6) + jj) * 1024 + T * 512
                lst.append(Ins(f"ds_read_b64_tr_b16 v[{fb + 2 * jj}:{fb + 2 * jj + 1}], v{va} offset:{off}", "dsr",
                               rd=[(f"v{va}", f"va{T}.{w}")], wr=tg[2 * jj:2 * jj + 2], pos=p + jj,
                               data=("V", j), slots=[j]))
            d = ("V", j)
        if d not in first_read and d != ("K", 0):
            bb = barrier([d], f"{d[0]}{d[1]}")
            bb.pos = p - 1
            bars.append(bb)
            fs.append(bb)
        for x in lst:
            first_read.setdefault(d, x.pos)
            last_read[d] = x.pos
            (pre if x.pos < 0 else fs).append(x)
    lastbar = max(x.pos for x in bars)
    for j in range(12):
        if last_read[("V", j)] + 1.5 >= lastbar and j < 11:
            bb = barrier([], f"rel{j}")
            bb.pos = last_read[("V", j)] + 4
            lastbar = bb.pos
            bars.append(bb)
            fs.append(bb)
    fs.sort(key=lambda x: (x.pos, x.seq))
    bars.sort(key=lambda x: x.pos)
    streams.append(("frag", fs))
    kl = last_read[("K", 11)]
    vs = lane_const("baseV", V_VA0, V_VA1, V_VA1)
    vs[-1].wr = [(f"v{V_VA0}", "va0.0")]
    vs.append(valu(f"v_mov_b32 v{V_VA1}, v{V_VA0}", [(f"v{V_VA0}", "va0.0")], [(f"v{V_VA1}", "va1.0")]))
    spread(vs, kl - 5.0, first_read[("V", 0)] - 1.6)
    aux += vs
    aux.sort(key=lambda x: (x.pos, x.seq))
    streams.append(("aux", aux))
    main = []
    for t in range(12):
        sm = softmax(t)
        a = 36 * (t + 1) + SMSTART
        b = 36 * (t + 2) - 0.2 if t < 11 else 36 * 12 + 40
        spread(sm, a, b)
        main += sm
        if t == 11:
            for x in sm:
                if x.meta.get("check"):
                    assert x.pos + 2 < rpos[DELTA], "check(11) must precede T1 start"
    lf = l_final()
    spread(lf, 432 + 45, 432 + 50)
    main += lf
    p2c = phase2_consts()
    spread(p2c, 432 + 51, 432 + 62)
    main += p2c
    tail = []
    for sg in range(3):
        e0 = evac(0, sg)
        spread(e0, rpos[24 * sg + 24] + (1.0 if sg < 2 else 3.0), rpos[24 * sg + 24 + DELTA] - 0.5)
        e1 = evac(1, sg)
        if sg < 2:
            main += e0
            spread(e1, rpos[24 * sg + 24 + DELTA] + 3.2, rpos[24 * sg + 48] - 0.5)
            main += e1
        else:
            tail = e1
            main += e0
    streams.append(("main", main))
    dst = deferred_stores()
    nst = 0
    for x in dst:
        x.pos = OPT["dst0"] + nst * OPT["dstpace"]
        if x.kind == "store":
            nst += 1
    streams.append(("dst", dst))
    qs = q_step(0)
    spread(qs, rpos[72] - 8, rpos[72] + 14)
    for x in qs:
        if x.kind == "dsr":
            x.pos = max(x.pos, rpos[72] + 1)
    streams.append(("qs", qs))

    def bar_after(p):
        for x in bars:
            if x.pos > p + 1.5:
                return x
        return None
    step = NWG * HB
    ds = []
    post = []
    tpos = [0.0]

    def put(groups, dep, pace):
        for g in groups:
            if dep is None:
                post.extend(g)
                continue
            e = dep.pos + 2 if dep is not True else 0
            tpos[0] = max(tpos[0] + pace, e)
            for k, x in enumerate(g):
                x.pos = tpos[0] - (len(g) - 1 - k) * 1.0
            if dep is not True:
                g[-1].meta["after"] = [dep]
            ds.extend(g)

    def pace():
        return OPT["pace1"] if tpos[0] < 432 else OPT["pace2"]
    tpos[0] = -OPT["pace1"] + 3
    for t in range(NK0, 12):
        put(dma_K(t), True, pace())
    x = salu(f"s_cmp_lt_u32 s{S_IT}, {NHEADS_PER_WG - 1}\ns_cselect_b32 s{S_TMP}, {HB}, 0\n"
             f"s_cselect_b32 s{S_TMP2}, {step}, 0\n"
             f"s_add_u32 s{S_Q}, s{S_Q}, s{S_TMP2}\ns_addc_u32 s{S_Q + 1}, s{S_Q + 1}, 0\n"
             f"s_add_u32 s{S_K}, s{S_K}, s{S_TMP2}\ns_addc_u32 s{S_K + 1}, s{S_K + 1}, 0\n"
             f"s_mov_b32 s{S_Q + 2}, s{S_TMP}\ns_mov_b32 s{S_K + 2}, s{S_TMP}", ws=9, wr=["scc"])
    x.pos = tpos[0] + 1
    ds.append(x)
    for j in range(12):
        put(dma_V(j), bar_after(last_read[("K", j)]), pace())
    for j in range(12):
        dep = bar_after(last_read[("V", j)])
        put(dma_Q(j), dep, OPT["pace3"])
    for t in range(NK0):
        put(dma_K(t), None, 0)
    streams.append(("dma", ds))
    body = schedule(spine_ins, streams)
    seen = False
    for x in body:
        if x.kind == "mfma" and x.wr[0][1].startswith("O(0,1,"):
            seen = True
        assert not (seen and x.meta.get("check")), "check after T1 start"
    return pre, body, tail, post


SLOTK = ("salu", "dsr", "dsw", "dma", "store", "bar", "waitvm", "branch")
LIGHT = ("salu", "bar", "waitvm", "branch")


def schedule(spine, streams):
    out = []
    emitted = set()
    ptr = {n: 0 for n, _ in streams}
    queue = {n: [] for n, _ in streams}
    items = dict(streams)

    def deps_ok(x):
        return all(id(d) in emitted for d in x.meta.get("after", []))

    def conflict(x, q):
        xr = set(r for r, _ in x.rd)
        xw = set(r for r, _ in x.wr) - {"scc"}
        for y in q:
            yr = set(r for r, _ in y.rd)
            yw = set(r for r, _ in y.wr) - {"scc"}
            if xw & (yr | yw) or xr & yw:
                return True
        return False

    def emit(x):
        out.append(x)
        emitted.add(id(x))

    def promote(lim):
        for n, lst in streams:
            while ptr[n] < len(lst) and lst[ptr[n]].kind in SLOTK and lst[ptr[n]].pos <= lim:
                queue[n].append(lst[ptr[n]])
                ptr[n] += 1

    N = len(spine)
    for g in range(N + 1):
        last = g == N
        if not last:
            emit(spine[g])
        lim = g + 0.999 if not last else 1e9
        promote(lim)
        nl = 1 if g % 3 == 2 else 0
        nm = 0
        slot = []
        for phase in ("light", "mem", "force"):
            progress = True
            while progress:
                progress = False
                for n, _ in streams:
                    q = queue[n]
                    if not q:
                        continue
                    x = q[0]
                    if not deps_ok(x):
                        continue
                    force = n == "frag" or x.pos < g - 3 or last
                    if phase == "light":
                        if x.kind not in LIGHT or (nl >= 1 and not force):
                            continue
                        nl += 1
                    elif phase == "mem":
                        if x.kind in LIGHT or (nm >= 1 and not force):
                            continue
                        nm += 1
                    elif not force:
                        continue
                    q.pop(0)
                    emit(x)
                    progress = True
                    promote(lim)
        while True:
            best = None
            for n, lst in streams:
                if ptr[n] >= len(lst):
                    continue
                x = lst[ptr[n]]
                if x.pos > lim:
                    continue
                if x.kind in SLOTK:
                    queue[n].append(x)
                    ptr[n] += 1
                    best = "again"
                    break
                if not deps_ok(x) or conflict(x, queue[n]):
                    continue
                if best is None or x.pos < best[1].pos:
                    best = (n, x)
            if best is None:
                break
            if best == "again":
                continue
            emit(best[1])
            ptr[best[0]] += 1
    while any(queue[n] for n in queue) or any(ptr[n] < len(l) for n, l in streams):
        moved = False
        for n, lst in streams:
            while queue[n] and deps_ok(queue[n][0]):
                emit(queue[n].pop(0))
                moved = True
            while not queue[n] and ptr[n] < len(lst) and deps_ok(lst[ptr[n]]):
                emit(lst[ptr[n]])
                ptr[n] += 1
                moved = True
        assert moved
    return out


def flat(groups):
    return [x for g in groups for x in g]


def build():
    pro = []
    P = pro.append
    P(salu(f"s_cmp_ge_u32 s2, {NWG}\ns_cbranch_scc1 L_end", ws=2))
    P(Ins("s_load_dwordx8 s[4:11], s[0:1], 0", "salu", smem=True))
    if OPT["stamp"]:
        P(Ins(f"s_load_dwordx2 s[{S_DBG}:{S_DBG + 1}], s[0:1], 40", "salu", smem=True))
    if OPT["dbgtime"]:
        P(Ins(f"s_load_dwordx2 s[{S_DBG}:{S_DBG + 1}], s[0:1], 32\ns_memrealtime s[58:59]", "salu", smem=True))
    P(valu("v_lshrrev_b32 v1, 6, v0", [], ["v1"]))
    P(valu(f"v_and_b32 v{V_LANE}, 63, v0", [], [(f"v{V_LANE}", "lane")]))
    P(valu(f"v_readfirstlane_b32 s{S_W}, v1", ["v1"], [f"s{S_W}"]))
    P(salu(f"s_mov_b32 s{S_C}, {f2u(CSCALE):#x}\ns_mov_b32 s{S_NC}, {f2u(-CSCALE):#x}\ns_mov_b32 s{S_T}, {f2u(8.0):#x}", ws=3))
    P(salu(f"s_mul_i32 s{S_W3072}, s{S_W}, 3072\ns_lshl_b32 s{S_W1024}, s{S_W}, 10\ns_mul_i32 s{S_WQO}, s{S_W}, {88 * 384}\n"
           f"s_and_b32 s{S_PAR}, s{S_W}, 1\ns_lshl_b32 s{S_PAR}, s{S_PAR}, 2\ns_mov_b32 s{S_IT}, 0\n"
           f"s_mul_i32 s{S_TMP}, s2, {HB}", ws=7))
    if OPT["codepf"]:
        P(salu(f"s_getpc_b64 s[{S_CODE}:{S_CODE + 1}]\nL_pc:\ns_sub_u32 s{S_CODE}, s{S_CODE}, L_pc-{NAME}\n"
               f"s_subb_u32 s{S_CODE + 1}, s{S_CODE + 1}, 0\ns_mov_b32 s{S_CODE + 2}, L_end-{NAME}\n"
               f"s_mov_b32 s{S_CODE + 3}, 0x20000\n"
               f"s_lshr_b32 s{S_TMP2}, s2, 3\ns_lshl_b32 s{S_TMP2}, s{S_TMP2}, 2\ns_add_u32 s{S_TMP2}, s{S_TMP2}, s{S_W}\n"
               f"s_and_b32 s{S_TMP2}, s{S_TMP2}, 63\ns_lshl_b32 s{S_TMP2}, s{S_TMP2}, 10\n"
               f"s_lshl_b32 m0, s{S_W1024}, 2\ns_add_u32 m0, m0, {STG}", ws=12))
        P(valu(f"v_lshlrev_b32 v1, 4, v{V_LANE}", [], ["v1"]))
        P(Ins(f"buffer_load_dwordx4 v1, s[{S_CODE}:{S_CODE + 3}], s{S_TMP2} offen lds", "store", data=("X", 0)))
    pro += lane_const("voffK", V_VOK, 1, 2)
    P(Ins("s_waitcnt lgkmcnt(0)", "wait"))
    for i, base in enumerate([S_Q, S_K, S_V, S_O]):
        P(salu(f"s_add_u32 s{base}, s{4 + 2 * i}, s{S_TMP}\ns_addc_u32 s{base + 1}, s{5 + 2 * i}, 0\n"
               f"s_mov_b32 s{base + 2}, {HB}\ns_mov_b32 s{base + 3}, 0x20000", ws=4))
    if OPT["stamp"]:
        P(salu(f"s_mov_b32 s{S_DBG + 2}, 0x100000\n"
               f"s_mov_b32 s{S_DBG + 3}, 0x20000\ns_memrealtime s[58:59]", ws=5, stampafter=True, name="start"))
    for slot in range(12):
        pro += flat(dma_Q(slot))
    pro[-1].meta.update(stampafter=True, name="qissued")
    pro += lane_const("voffV", V_VOV, 1, 2)
    pro += q_step(0)
    P(barrier([], "pq0"))
    for t in range(NK0):
        pro += flat(dma_K(t))
    P(salu(f"s_mov_b32 s{S_OP}, s{S_O}\ns_mov_b32 s{S_OP + 1}, s{S_O + 1}\ns_mov_b32 s{S_OP + 2}, 0\n"
           f"s_mov_b32 s{S_OP + 3}, 0x20000", ws=4))
    pro += phase2_consts() + copy_stage_addrs()
    for TT, base in ((0, V_D0), (1, V_D1)):
        for b in range(3):
            for k in range(8):
                P(valu(f"v_mov_b32 v{base + 8 * b + k}, 0", [], [(f"v{base + 8 * b + k}", f"OP(2,{TT},{b}).{k}")]))
    if OPT["stamp"]:
        P(salu(f"s_mov_b32 m0, {STG}\ns_mov_b32 s{S_TMP}, 0x1000000", ws=2, wr=["m0"]))
        P(Ins(f"buffer_load_dword v{V_VOK}, s[{S_O}:{S_O + 3}], s{S_TMP} offen lds", "store", data=("X", 0)))
    pre, body, tail, post = build_body()
    q1 = [Ins("L_q1:", "label", ws=0)]
    q1 += q_step(1)
    q1 += q_step(2)
    q1 += k_addr_setup(V_TMPA, V_FR)
    q1.append(barrier([("K", 0)], "q2"))
    q1 += pre
    step = NWG * HB
    adv = lambda s: f"s_add_u32 s{s}, s{s}, {step}\ns_addc_u32 s{s + 1}, s{s + 1}, 0"
    mid = [salu(f"s_cmp_ge_u32 s{S_IT}, {NHEADS_PER_WG - 1}\ns_cbranch_scc1 L_last", ws=2, name="tail", stampbefore=True)]
    mid.append(barrier([], "relend"))
    mid += post
    mid += evac(1, 2, defer=True) + copy_stage_addrs()
    mid.append(Ins("s_waitcnt lgkmcnt(0)", "wait", lgkm0=True, stampafter=True, name="end"))
    last = [Ins("L_last:\ns_waitcnt lgkmcnt(0)", "wait")] + list(tail)
    if OPT["stamp"]:
        pro = add_stamps(pro)
        rest = add_stamps(q1 + body + mid)
        q1, body, mid = [], rest, [stamp_dump()]
        n = len(STAMPS)
        last.append(Ins(f"s_mov_b32 s{60 + n - 3}, s{S_ST}\ns_mov_b32 s{60 + n - 2}, s{S_ST}\n{STAMPOP} s[{S_ST}:{S_ST + 1}]", "salu", ws=3))
        last.append(stamp_dump())
        print("STAMPS", STAMPS, file=sys.stderr)
        open("stamps.txt", "w").write(" ".join(STAMPS))
    if OPT["dbgtime"]:
        last.append(Ins(f"s_waitcnt vmcnt(0)\ns_memrealtime s[56:57]\ns_mov_b32 s{S_DBG + 2}, 256\ns_mov_b32 s{S_DBG + 3}, 0x20000\n"
                        f"s_waitcnt lgkmcnt(0)\ns_not_b32 s58, s58\nv_mov_b32 v0, s56\nv_mov_b32 v1, s58\nv_mov_b32 v2, 0\n"
                        f"s_mov_b64 exec, 1\n"
                        f"buffer_atomic_umax v0, v2, s[{S_DBG}:{S_DBG + 3}], 0 offen\n"
                        f"buffer_atomic_umax v1, v2, s[{S_DBG}:{S_DBG + 3}], 0 offen offset:4", "salu", ws=10))
    mid.append(salu(f"s_add_u32 s{S_IT}, s{S_IT}, 1\n"
                    f"s_mov_b32 s{S_OP}, s{S_O}\ns_mov_b32 s{S_OP + 1}, s{S_O + 1}\ns_mov_b32 s{S_OP + 2}, {HB}\n"
                    f"{adv(S_V)}\n{adv(S_O)}\ns_branch L_q1", ws=9))
    return pro, q1 + body + mid, last


def insert_lgkm(seq):
    out = []
    pend = []
    nxt = {}
    cur = None
    for x in seq:
        if x.kind == "bar":
            cur = x
            nxt[id(x)] = set()
        elif x.kind == "dma" and cur is not None:
            nxt[id(cur)].add(x.meta["slot"])
    nextm = {}
    nm = None
    for x in reversed(seq):
        if x.kind == "mfma":
            nextm[id(x)] = nm
            nm = x

    def needed(x):
        need = None
        regs = set(r for r, _ in x.rd) | set(r for r, _ in x.wr)
        for k, p in enumerate(pend):
            if p.kind == "dsr" and regs & set(r for r, _ in p.wr):
                need = k
        return need
    for i, x in enumerate(seq):
        need = needed(x)
        if x.kind == "bar":
            for k, p in enumerate(pend):
                if p.kind == "dsr" and set(p.meta.get("slots", [])) & nxt[id(x)]:
                    need = k if need is None else max(need, k)
            pn = x.meta.pop("preneed", None)
            if pn is not None:
                need = pn if need is None else max(need, pn)
            x.meta["lgkm"] = None
            if need is not None:
                x.meta["lgkm"] = min(15, len(pend) - 1 - need)
                pend = pend[len(pend) - x.meta["lgkm"]:] if x.meta["lgkm"] else []
        elif need is not None:
            n = min(15, len(pend) - 1 - need)
            out.append(Ins(f"s_waitcnt lgkmcnt({n})", "wait", lgkm=n))
            pend = pend[len(pend) - n:] if n else []
        if x.kind == "wait" and ("lgkmcnt(0)" in x.txt):
            pend = []
        out.append(x)
        if x.kind in ("dsr", "dsw"):
            pend.append(x)
        if x.kind == "mfma" and nextm[id(x)] is not None:
            need = needed(nextm[id(x)])
            if need is not None:
                if seq[i + 1].kind == "bar":
                    seq[i + 1].meta["preneed"] = need
                else:
                    n = min(15, len(pend) - 1 - need)
                    out.append(Ins(f"s_waitcnt lgkmcnt({n})", "wait", lgkm=n))
                    pend = pend[len(pend) - n:] if n else []
    return out


def resolve_vm(dyn):
    vm = []
    for x in dyn:
        if x.kind in ("dma", "store"):
            vm.append(x.meta["data"])
        elif x.kind in ("bar", "waitvm"):
            n = None
            for d in x.meta["need"]:
                idx = max(i for i, y in enumerate(vm) if y == d)
                k = len(vm) - 1 - idx
                n = k if n is None else min(n, k)
            x.meta.setdefault("vmlist", []).append(n)
    for x in dyn:
        if x.kind in ("bar", "waitvm"):
            l = x.meta["vmlist"]
            x.meta["vm"] = None if l[0] is None else min(63, min(l))


def finalize_waits(seq):
    for x in seq:
        if x.kind in ("bar", "waitvm"):
            w = []
            if x.meta.get("vm") is not None:
                w.append(f"vmcnt({x.meta['vm']})")
            if x.meta.get("lgkm") is not None:
                w.append(f"lgkmcnt({x.meta['lgkm']})")
            t = ("s_waitcnt " + " ".join(w)) if w else ""
            if x.kind == "bar":
                x.txt = (t + "\n" if t else "") + "s_barrier"
                x.ws = 2 if t else 1
            else:
                x.txt = t
            x.txt += f"   ; {x.meta.get('name', '')} need={x.meta['need']} vm={x.meta['vmlist']}"


def hazards(dyn):
    fix = {}
    isv = lambda x: x.kind in ("valu", "trans")
    for i, x in enumerate(dyn):
        if x.kind in ("label",):
            continue
        rd = set(r for r, _ in x.rd)
        wr = set(r for r, _ in x.wr)
        dist = 0
        j = i - 1
        need = 0
        while j >= 0 and dist < 14:
            y = dyn[j]
            ywr = set(r for r, _ in y.wr)
            yrd = set(r for r, _ in y.rd)
            req = 0
            if y.kind == "mfma":
                if x.kind == "mfma":
                    ab = rd - x.meta["cregs"]
                    if ab & ywr:
                        req = 12
                    elif x.meta["cregs"] & ywr and x.meta["cregs"] != ywr:
                        req = 10
                    elif (wr & ywr) and not (x.meta["cregs"] & ywr):
                        req = 10
                elif (rd | wr) & ywr:
                    req = 12
                elif isv(x) and wr & y.meta["cregs"]:
                    req = 7
            elif isv(y):
                if x.kind == "mfma" and rd & ywr:
                    req = 2
                if y.kind == "trans" and x.kind == "valu" and rd & ywr:
                    req = max(req, 1)
                if x.meta.get("permlane") and rd & ywr:
                    req = max(req, 2)
                if "readfirstlane" in x.txt and rd & ywr:
                    req = max(req, 1)
            elif y.kind == "store":
                if wr & yrd:
                    req = 2
            elif y.kind == "salu":
                if x.kind == "dma" and "m0" in ywr:
                    req = 1
            if req > dist:
                need = max(need, req - dist)
            dist += y.ws + fix.get(id(y), 0)
            j -= 1
        if need:
            fix[id(x)] = max(fix.get(id(x), 0), need)
    return fix


def check_tags(dyn):
    st = {}
    errs = 0
    for x in dyn:
        for r, tg in x.rd:
            if tg is not None and st.get(r) != tg:
                print(f"TAG ERROR: {x.txt.splitlines()[-1]} reads {r}: expected {tg} found {st.get(r)} (pos {x.pos})",
                      file=sys.stderr)
                errs += 1
                if errs > 20:
                    sys.exit(1)
        for r, tg in x.wr:
            st[r] = tg
    if errs:
        sys.exit(1)


def check_lds(dyn):
    cur = {}
    reads = {}
    released = {s: True for s in range(12)}
    nvm = 0
    nlds = 0
    done_vm = 0
    done_lds = 0
    for x in dyn:
        if x.kind in ("bar", "waitvm", "wait"):
            vm = x.meta.get("vm")
            if vm is not None:
                done_vm = max(done_vm, nvm - vm)
            lg = x.meta.get("lgkm")
            if x.kind == "wait" and "lgkmcnt(0)" in x.txt:
                lg = 0
            if lg is not None:
                done_lds = max(done_lds, nlds - lg)
            if x.kind == "bar":
                for s, c in cur.items():
                    if len(c["ops"]) == 3 and max(c["ops"]) < done_vm:
                        c["visible"] = True
                for s in range(12):
                    if all(i < done_lds for i in reads.get(s, [])):
                        released[s] = True
        elif x.kind == "dma":
            s = x.meta["slot"]
            c = cur.get(s)
            if c is None or len(c["ops"]) == 3:
                assert released[s], f"DMA into unreleased slot {s}: {x.meta} pos {x.pos}"
                if c is not None:
                    assert c["nread"] == c["exp"], f"slot {s} overwritten after {c['nread']} reads of {c['data']}"
                exp = {"K": 12, "V": 24, "Q": 12}[x.meta["data"][0]]
                cur[s] = c = dict(data=x.meta["data"], ops=[], visible=False, nread=0, exp=exp)
                reads[s] = []
            assert c["data"] == x.meta["data"]
            c["ops"].append(nvm)
            nvm += 1
        elif x.kind == "store":
            nvm += 1
        elif x.kind in ("dsr", "dsw"):
            for s in x.meta.get("slots", []):
                c = cur[s]
                assert c["data"] == x.meta["data"], f"read of {x.meta['data']} finds {c['data']} in slot {s}"
                assert len(c["ops"]) == 3 and max(c["ops"]) < done_vm, f"read before landing {x.meta} pos {x.pos}"
                if not x.meta.get("private"):
                    assert c["visible"], f"read before barrier {x.meta} pos {x.pos}"
                c["nread"] += 1
                reads[s].append(nlds)
                released[s] = False
            nlds += 1


def rare_code():
    L = []
    A = L.append
    if OPT["nomax"]:
        return L
    for t in range(1, 12):
        for b in range(3):
            tm, nmc, l = f"v{V_TM + b}", f"v{V_NMC + b}", f"v{V_L + b}"
            s = Sreg(t, b)
            A(f"L_rare{t}_{b}:")
            A("s_waitcnt lgkmcnt(0)")
            A("s_nop 15")
            if t <= 8:
                A(f"v_mov_b32 v{V_SAVE}, v0")
                A(f"v_mov_b32 v{V_SAVE + 1}, v1")
            else:
                A(f"s_lshl_b32 s{S_TMP}, s{S_W1024}, 2")
                A(f"v_lshlrev_b32 v{V_LANE}, 3, v{V_LANE}")
                A(f"v_add_u32 v{V_LANE}, s{S_TMP}, v{V_LANE}")
                A(f"v_add_u32 v{V_LANE}, {STG}, v{V_LANE}")
                A(f"ds_write_b64 v{V_LANE}, v[0:1]")
                A("s_waitcnt lgkmcnt(0)")
            A(f"v_mov_b32 v0, {tm}")
            A("s_nop 1")
            A(f"v_permlane32_swap_b32 {tm}, v0")
            A("s_nop 1")
            A(f"v_max3_f32 {tm}, {tm}, v0, 0")
            A(f"v_sub_f32 {nmc}, {nmc}, {tm}")
            for r in range(16):
                A(f"v_sub_f32 v{s + r}, v{s + r}, {tm}")
            A(f"v_sub_f32 {tm}, 0, {tm}")
            A(f"v_exp_f32 {tm}, {tm}")
            A("s_nop 0")
            A(f"v_mul_f32 {l}, {l}, {tm}")
            if t == 11:
                X = Oset(0, 0)
                for r in range(16):
                    a = 48 * X + 16 * b + r
                    A(f"v_accvgpr_read_b32 v0, a{a}")
                    A(f"v_mul_f32 v0, v0, {tm}")
                    A(f"v_accvgpr_write_b32 a{a}, v0")
            A(f"s_call_b64 s[{S_RET}:{S_RET + 1}], L_resc{t - 1}_{b}")
            if t <= 8:
                A(f"v_mov_b32 v0, v{V_SAVE}")
                A(f"v_mov_b32 v1, v{V_SAVE + 1}")
            else:
                A(f"ds_read_b64 v[0:1], v{V_LANE}")
                A(f"v_mbcnt_lo_u32_b32 v{V_LANE}, -1, 0")
                A(f"v_mbcnt_hi_u32_b32 v{V_LANE}, -1, v{V_LANE}")
                A("s_waitcnt lgkmcnt(0)")
            A("s_nop 1")
            A(f"s_branch L_ret{t}_{b}")
    for b in range(3):
        tm, nmc = f"v{V_TM + b}", f"v{V_NMC + b}"
        for t in range(10, -1, -1):
            A(f"L_resc{t}_{b}:")
            pf, pr = Ploc(t, b)
            for k in range(8):
                if pf == "a":
                    A(f"v_accvgpr_read_b32 v1, a{pr + k}")
                    p = "v1"
                else:
                    p = f"v{pr + k}"
                A(f"v_lshlrev_b32 v0, 16, {p}")
                A(f"v_and_b32 {p}, 0xffff0000, {p}")
                A(f"v_mul_f32 v0, v0, {tm}")
                A(f"v_mul_f32 {p}, {p}, {tm}")
                A(f"v_cvt_pk_bf16_f32 {p}, v0, {p}")
                if pf == "a":
                    A(f"v_accvgpr_write_b32 a{pr + k}, v1")
        A(f"s_setpc_b64 s[{S_RET}:{S_RET + 1}]")
    return L


def main():
    pro, loop, last = build()
    pro = insert_lgkm(pro + [Ins("s_waitcnt lgkmcnt(0)", "wait")])
    loop = insert_lgkm(loop)
    last = insert_lgkm(last)
    i0 = [i for i, x in enumerate(loop) if "s_cbranch_scc1 L_last" in x.txt][0]
    dyn = pro + loop + loop[:i0 + 1] + last
    resolve_vm(dyn)
    finalize_waits(pro + loop + last)
    check_tags(dyn)
    check_lds(dyn)
    fix = hazards(dyn)
    out = []
    hdr = open("standalone__gqa_softmax__near_ridge.s.ref").read().split("; Override")[0]
    out.append(hdr.rstrip())
    out.append(f"; @launch grid=({NWG},1,1) block=(256,1,1) lds=163840")
    out.append('.amdgcn_target "amdgcn-amd-amdhsa--gfx950"')
    out.append(f".text\n.globl {NAME}\n.p2align 8\n.type {NAME},@function\n{NAME}:")
    nn = 0
    for x in pro + loop + last:
        k = fix.get(id(x), 0)
        if k:
            out.append(f"s_nop {k - 1}")
            nn += 1
        if x.txt.strip():
            out.append(x.txt)
    out.append("L_end:\ns_endpgm")
    out += rare_code()
    out.append(f'''.section .rodata,"a"
.p2align 6
.amdhsa_kernel {NAME}
  .amdhsa_next_free_vgpr 512
  .amdhsa_next_free_sgpr 102
  .amdhsa_accum_offset 256
  .amdhsa_group_segment_fixed_size 0
  .amdhsa_kernarg_size 48
  .amdhsa_user_sgpr_count 2
  .amdhsa_user_sgpr_kernarg_segment_ptr 1
  .amdhsa_system_sgpr_workgroup_id_x 1
.end_amdhsa_kernel''')
    print("\n".join(out))
    print(f"nops inserted: {nn}; loop instrs {len(loop)}", file=sys.stderr)


main()
```
